```python
import torch

def _softmax(x, axis=-1):
    return torch.softmax(x, dim=axis)

def _gelu(x):
    return torch.nn.functional.gelu(x, approximate='tanh')

def _silu(x):
    return torch.nn.functional.silu(x)

def _sigmoid(x):
    return torch.sigmoid(x)

def _layernorm(x, axis=-1, eps=1e-05):
    m = x.mean(dim=axis, keepdim=True)
    v = x.var(dim=axis, keepdim=True, unbiased=False)
    return (x - m) / torch.sqrt(v + eps)

def _scatter_add(tgt, idx, src, axis=0):
    return tgt.clone().index_add_(axis, idx, src)

def _segment_sum(src, seg, n):
    out = torch.zeros((n,) + src.shape[1:], dtype=src.dtype)
    return out.index_add_(0, seg, src)

def _pad(x, pw):
    flat = tuple((v for pair in reversed(pw) for v in pair))
    return torch.nn.functional.pad(x, flat)
kernel_name = 'interleave_layers__memory_aug_recurrent_mem_tr__linear_kernel_hedgehog__prompt'

def setup_inputs():

    _w = lambda a: (lambda t: t.to(torch.bfloat16) if t.is_floating_point() else t)(torch.as_tensor(a))

    def _A_setup():
        B, S, Dm = (1, 2048, 640)
        H, Dh = (32, 192)
        M, seg = (8, 32)
        seg = min(seg, S)
        S = S // seg * seg
        return {'x': _w((lambda *s: torch.randn(*s, dtype=torch.bfloat16) * 0.05)(B, S, Dm)), 'mem0': _w((lambda *s: torch.randn(*s, dtype=torch.bfloat16) * 0.8)(B, M, Dm)), 'Wq': _w((lambda *s: torch.randn(*s, dtype=torch.bfloat16) * 1.6)(Dm, H, Dh) * Dm ** (-0.5)), 'Wk': _w((lambda *s: torch.randn(*s, dtype=torch.bfloat16) * 1.6)(Dm, H, Dh) * Dm ** (-0.5)), 'Wv': _w((lambda *s: torch.randn(*s, dtype=torch.bfloat16) * 0.8)(Dm, H, Dh) * Dm ** (-0.5)), 'Wo': _w((lambda *s: torch.randn(*s, dtype=torch.bfloat16) * 0.8)(H, Dh, Dm) * (H * Dh) ** (-0.5)), 'seg_len': seg}
    _A_in = _A_setup()

    def _B_setup():
        B, S, D, H = (1, 2048, 640, 32)
        Dh = D // H
        return {'x': _w((lambda *s: torch.randn(*s, dtype=torch.bfloat16) * 0.05)(B, S, D)), 'wqkv': _w((lambda *s: torch.randn(*s, dtype=torch.bfloat16) * 0.4)(D, 3 * D)), 'w_phi': _w((lambda *s: torch.randn(*s, dtype=torch.bfloat16) * 0.4)(H, Dh, Dh) * Dh ** (-0.5)), 'wo': _w((lambda *s: torch.randn(*s, dtype=torch.bfloat16) * 0.05)(D, D))}
    _B_in = _B_setup()
    return {'A_x': _A_in['x'], 'A_mem0': _A_in['mem0'], 'A_Wq': _A_in['Wq'], 'A_Wk': _A_in['Wk'], 'A_Wv': _A_in['Wv'], 'A_Wo': _A_in['Wo'], 'A_seg_len': _A_in['seg_len'], 'B_x': _B_in['x'], 'B_wqkv': _B_in['wqkv'], 'B_w_phi': _B_in['w_phi'], 'B_wo': _B_in['wo']}

def reference(A_x, A_mem0, A_Wq, A_Wk, A_Wv, A_Wo, A_seg_len, B_x, B_wqkv, B_w_phi, B_wo):

    def _A_ref(x, mem0, Wq, Wk, Wv, Wo, seg_len):
        B, S, Dm = x.shape
        H, Dh = (Wq.shape[1], Wq.shape[2])
        M = mem0.shape[1]
        scale = Dh ** (-0.5)
        n_seg = S // seg_len
        L = M + seg_len
        idx = torch.arange(L)
        mask = (idx[:, None] < M) | (idx[:, None] >= idx[None, :])
        mem = mem0
        outs = []
        for s in range(n_seg):
            xs = x[:, s * seg_len:(s + 1) * seg_len, :].clone()
            h = torch.concatenate([mem, xs], axis=1)
            q = torch.einsum('btd,dhe->bhte', h, Wq)
            k = torch.einsum('btd,dhe->bhte', h, Wk)
            v = torch.einsum('btd,dhe->bhte', h, Wv)
            scores = torch.einsum('bhqe,bhke->bhqk', q, k) * scale
            scores = torch.where(mask[None, None], scores, -1000000000.0)
            p = _softmax(scores, axis=-1)
            o = torch.einsum('bhqk,bhke->bhqe', p, v)
            o = torch.einsum('bhte,hed->btd', o, Wo)
            mem = o[:, :M, :].clone()
            outs.append(o[:, M:, :])
        return torch.concatenate(outs, axis=1)

    def _B_ref(x, wqkv, w_phi, wo):
        B, S, D = x.shape
        H = 32
        Dh = D // H
        qkv = (lambda x, *d: x.permute(*d))((x @ wqkv).reshape(B, S, 3, H, Dh), 2, 0, 3, 1, 4)
        q, k, v = (qkv[0], qkv[1], qkv[2])
        pq = torch.einsum('bhsd,hdf->bhsf', q, w_phi)
        pk = torch.einsum('bhsd,hdf->bhsf', k, w_phi)
        phi_q = torch.concatenate([_softmax(pq, axis=-1), _softmax(-pq, axis=-1)], axis=-1)
        phi_k = torch.concatenate([_softmax(pk, axis=-1), _softmax(-pk, axis=-1)], axis=-1)
        kv = torch.einsum('bhsf,bhsd->bhfd', phi_k, v)
        z = torch.einsum('bhsf->bhf', phi_k)
        num = torch.einsum('bhqf,bhfd->bhqd', phi_q, kv)
        den = torch.einsum('bhqf,bhf->bhq', phi_q, z)[..., None] + 1e-06
        o = num / den
        return (lambda x, *d: x.permute(*d))(o, 0, 2, 1, 3).reshape(B, S, D) @ wo
    x = A_x
    x = x + _A_ref(_layernorm(x, axis=-1), A_mem0, A_Wq, A_Wk, A_Wv, A_Wo, A_seg_len)
    x = x + _B_ref(_layernorm(x, axis=-1), B_wqkv, B_w_phi, B_wo)
    x = x + _A_ref(_layernorm(x, axis=-1), A_mem0, A_Wq, A_Wk, A_Wv, A_Wo, A_seg_len)
    x = x + _B_ref(_layernorm(x, axis=-1), B_wqkv, B_w_phi, B_wo)
    return x
```

```python
import re

_REG_RE = re.compile(r'^(-|abs\(|\|)?([vas])(\d+|\[(\d+):(\d+)\])\)?\|?$')


def parse_reg(tok):
    tok = tok.strip()
    if tok in ('vcc',):
        return [('s', 'vcc')]
    if tok in ('vcc_lo', 'vcc_hi'):
        return [('s', 'vcc')]
    if tok in ('exec', 'exec_lo', 'exec_hi'):
        return [('s', 'exec')]
    if tok == 'm0':
        return [('s', 'm0')]
    t = tok
    if t.startswith('-'):
        t = t[1:]
    if t.startswith('abs('):
        t = t[4:-1]
    if t.startswith('|'):
        t = t.strip('|')
    m = re.match(r'^([vas])(\d+)$', t)
    if m:
        return [(m.group(1), int(m.group(2)))]
    m = re.match(r'^([vas])\[(\d+):(\d+)\]$', t)
    if m:
        return [(m.group(1), i) for i in range(int(m.group(2)), int(m.group(3)) + 1)]
    return []


TRANS = ('v_exp_f32', 'v_log_f32', 'v_rcp_f32', 'v_rsq_f32', 'v_sqrt_f32', 'v_sin_f32', 'v_cos_f32',
         'v_rcp_iflag_f32', 'v_exp_f16', 'v_rcp_f16')
RMW_DST = ('v_fmac_f32', 'v_dot2c_f32_bf16', 'v_pk_fmac_f16', 'v_fmac_f32_e32', 'v_fmac_f32_e64', 'v_fmac_f32_dpp',
           'v_dot2c_f32_bf16_e32', 'v_writelane_b32')


class Inst:
    __slots__ = ('text', 'mn', 'ops', 'mods', 'cls', 'wr', 'rd', 'passes', 'dpp', 'srcA', 'srcB', 'srcC', 'target',
                 'nops', 'store_data', 'wide_store', 'lanesel', 'ldsdma')

    def __init__(self, text):
        self.text = text
        body = text.split(';')[0].strip()
        parts = body.split(None, 1)
        self.mn = mn = parts[0]
        rest = parts[1] if len(parts) > 1 else ''
        ops = []
        cur = ''
        depth = 0
        for ch in rest:
            if ch in '[(':
                depth += 1
            if ch in '])':
                depth -= 1
            if ch == ',' and depth == 0:
                ops.append(cur.strip())
                cur = ''
            else:
                cur += ch
        mods = ''
        if cur.strip():
            c = cur.strip()
            sp = c.split(None, 1)
            ops.append(sp[0])
            if len(sp) > 1:
                mods = sp[1]
        self.ops = ops
        self.mods = mods
        self.wr = set()
        self.rd = set()
        self.passes = 0
        self.dpp = False
        self.srcA = self.srcB = self.srcC = set()
        self.target = None
        self.nops = 1
        self.store_data = set()
        self.wide_store = False
        self.lanesel = set()
        self.ldsdma = False
        R = lambda i: set(parse_reg(ops[i])) if i < len(ops) else set()
        allr = lambda lo: set().union(*[R(i) for i in range(lo, len(ops))]) if len(ops) > lo else set()
        if mn.startswith('v_mfma') or mn.startswith('v_smfmac'):
            self.cls = 'mfma'
            self.wr = R(0)
            self.srcA, self.srcB, self.srcC = R(1), R(2), R(3)
            self.rd = self.srcA | self.srcB | self.srcC
            if '32x32' in mn:
                self.passes = 8
            elif '16x16' in mn:
                self.passes = 4
            elif '4x4' in mn:
                self.passes = 2
            if mn in ('v_mfma_f32_32x32x2_f32',):
                self.passes = 16
            if mn in ('v_mfma_f32_16x16x4_f32',):
                self.passes = 8
            assert not mn.endswith('_f32_f32'), 'sgemm rules not modelled'
        elif mn.startswith('v_'):
            self.cls = 'valu'
            base = mn
            self.dpp = ('_dpp' in mn) or any(k in mods for k in ('quad_perm', 'row_shr', 'row_shl', 'row_ror',
                                                                   'row_mirror', 'row_half_mirror', 'row_bcast',
                                                                   'wave_', 'row_newbcast'))
            if mn.startswith('v_cmpx'):
                self.wr = R(0) | {('s', 'exec')}
                self.rd = allr(1)
            elif mn.startswith('v_cmp'):
                self.wr = R(0)
                self.rd = allr(1)
            elif mn.startswith('v_permlane') and 'swap' in mn:
                self.wr = R(0) | R(1)
                self.rd = R(0) | R(1)
            elif mn.startswith('v_swap'):
                self.wr = R(0) | R(1)
                self.rd = R(0) | R(1)
            elif mn.startswith(('v_add_co', 'v_sub_co', 'v_subrev_co', 'v_addc_co', 'v_subb_co', 'v_div_scale',
                                'v_mad_u64_u32', 'v_mad_i64_i32')):
                self.wr = R(0) | R(1)
                self.rd = allr(2)
            elif mn.startswith(('v_readlane', 'v_readfirstlane')):
                self.wr = R(0)
                self.rd = allr(1)
                if mn.startswith('v_readlane'):
                    self.lanesel = R(2)
            elif mn == 'v_nop':
                pass
            else:
                self.wr = R(0)
                self.rd = allr(1)
                if mn in RMW_DST or mn.startswith('v_fmac') or mn.startswith('v_dot2c'):
                    self.rd |= R(0)
                if mn.startswith('v_writelane'):
                    self.lanesel = R(2)
                if self.dpp:
                    self.rd |= R(0)
                if mn.startswith('v_cndmask') and len(ops) == 3:
                    self.rd |= {('s', 'vcc')}
                if mn.startswith('v_div_fmas'):
                    self.rd |= {('s', 'vcc')}
        elif mn.startswith(('buffer_', 'global_', 'flat_', 'scratch_')):
            self.cls = 'vmem'
            words = mods.split()
            is_lds = ('lds' in words) or ('_lds_' in mn)
            if 'store' in mn:
                self.rd = allr(0)
                if mn.startswith('buffer_'):
                    self.store_data = R(0)
                else:
                    self.store_data = R(1)
                self.wide_store = mn.endswith(('x3', 'x4'))
            elif 'atomic' in mn:
                self.rd = allr(0)
                if 'sc0' in words:
                    self.wr = R(0)
            elif mn in ('buffer_inv', 'buffer_wbl2'):
                pass
            elif is_lds:
                self.ldsdma = True
                self.rd = allr(0) | {('s', 'm0')}
            else:
                self.wr = R(0)
                self.rd = allr(1)
        elif mn.startswith('ds_'):
            self.cls = 'ds'
            if mn.startswith(('ds_write', 'ds_add_f32', 'ds_add_u32', 'ds_or_b32', 'ds_max', 'ds_min')) and 'rtn' not in mn:
                self.rd = allr(0)
            else:
                self.wr = R(0)
                self.rd = allr(1)
        elif mn.startswith('s_'):
            self.cls = 'salu'
            if mn == 's_nop':
                self.nops = int(ops[0], 0) + 1
            elif mn.startswith(('s_branch', 's_cbranch')):
                self.cls = 'branch'
                self.target = ops[0]
                if 'vcc' in mn:
                    self.rd = {('s', 'vcc')}
                if 'exec' in mn:
                    self.rd = {('s', 'exec')}
            elif mn.startswith(('s_waitcnt', 's_barrier', 's_endpgm', 's_sleep', 's_setprio', 's_sethalt')):
                pass
            elif mn.startswith(('s_cmp', 's_bitcmp')):
                self.rd = allr(0)
            elif mn.startswith(('s_load', 's_buffer_load', 's_memtime', 's_memrealtime', 's_atomic')):
                self.cls = 'smem'
                self.wr = R(0)
                self.rd = allr(1)
            elif 'saveexec' in mn:
                self.wr = R(0) | {('s', 'exec')}
                self.rd = allr(1) | {('s', 'exec')}
            else:
                self.wr = R(0)
                self.rd = allr(1)
        else:
            raise ValueError('unknown instruction: ' + text)


class Label:
    def __init__(self, name):
        self.name = name


MAXAGE = 24


def _isv(r):
    return r[0] in ('v', 'a')


def required(prev_events, ins):
    need = 0
    for age, p in prev_events:
        req = 0
        pw = p.wr
        if p.cls == 'valu':
            pv = {r for r in pw if _isv(r)}
            ps = {r for r in pw if r[0] == 's'}
            if ins.cls == 'mfma' and (pv & ins.rd):
                req = max(req, 2)
            if ins.cls == 'mfma' and ('s', 'exec') in ps:
                req = max(req, 4)
            if ins.cls == 'valu':
                if ins.dpp and (pv & ins.rd):
                    req = max(req, 2)
                if ins.dpp and ('s', 'exec') in ps:
                    req = max(req, 5)
                if ins.mn.startswith(('v_readlane', 'v_readfirstlane')) and (pv & ins.rd):
                    req = max(req, 1)
                if ins.mn.startswith('v_permlane') and (pv & ins.rd):
                    req = max(req, 2)
                if ins.mn.startswith('v_permlane') and ('s', 'exec') in ps:
                    req = max(req, 4)
                if p.mn.split('_e')[0] in TRANS or p.mn in TRANS:
                    if (pv & ins.rd) and not (ins.mn in TRANS):
                        req = max(req, 1)
                if ps & ins.rd:
                    req = max(req, 2)
                if ps & ins.lanesel:
                    req = max(req, 4)
                if ('s', 'exec') in ps and ins.mn.startswith(('v_readlane', 'v_readfirstlane', 'v_writelane')):
                    req = max(req, 4)
                if ins.mn.startswith('v_div_fmas') and ('s', 'vcc') in ps:
                    req = max(req, 4)
                if ('sdwa' in p.mn or 'op_sel' in p.mods or 'dst_sel' in p.mods) and (pv & (ins.rd | ins.wr)):
                    req = max(req, 1)
            if ins.cls == 'vmem' and (ps & ins.rd):
                req = max(req, 5)
            if p.mn in TRANS and ins.cls in ('vmem', 'ds', 'mfma') and (pv & ins.rd):
                req = max(req, 1 if ins.cls != 'mfma' else 2)
            if ins.cls in ('salu', 'branch', 'smem') and (ps & ins.rd):
                req = max(req, 1)
        elif p.cls == 'mfma':
            n = p.passes
            big = {2: 5, 4: 8, 8: 12, 16: 20}[n]
            ovl = {2: 4, 4: 6, 8: 10, 16: 18}[n]
            war = {2: 1, 4: 3, 8: 7, 16: 15}[n]
            if ins.cls == 'mfma':
                if pw & (ins.srcA | ins.srcB):
                    req = max(req, big)
                if pw & ins.srcC:
                    if pw == ins.srcC and ins.mn == p.mn:
                        req = max(req, 2 if n == 2 else 0)
                    else:
                        req = max(req, ovl)
                elif pw & ins.wr:
                    req = max(req, ovl)
            elif ins.cls in ('valu', 'vmem', 'ds'):
                if pw & (ins.rd | ins.wr):
                    req = max(req, big)
                if ins.cls == 'valu' and (p.srcC & ins.wr):
                    req = max(req, war)
                if ins.cls in ('vmem', 'ds') and (p.srcC & ins.wr):
                    req = max(req, war)
        elif p.cls == 'salu':
            if ('s', 'm0') in pw and (ins.ldsdma or 'addtid' in ins.mn or ins.mn.startswith('s_movrel')):
                req = max(req, 1)
        elif p.cls == 'vmem':
            if p.wide_store and (p.store_data & ins.wr):
                req = max(req, 2 if ins.cls == 'valu' else 1)
        if req > age:
            need = max(need, req - age)
    return need


class Kernel:
    def __init__(self, name, vgpr=256, agpr=0, sgpr=102, wgid_y=False):
        self.name = name
        self.items = []
        self.vgpr = vgpr
        self.agpr = agpr
        self.sgpr = sgpr
        self.wgid_y = wgid_y
        self._lab = 0

    def __call__(self, text):
        for line in text.split('\n'):
            line = line.strip()
            if not line or line.startswith(';'):
                continue
            if line.endswith(':') and ' ' not in line:
                self.items.append(Label(line[:-1]))
            else:
                self.items.append(Inst(line))

    def label(self, name):
        self.items.append(Label(name))

    def newlabel(self, base='L'):
        self._lab += 1
        return f'{self.name}_{base}{self._lab}'

    def add_exit_stamps(self, base):
        pre = [Inst(t) for t in ('v_lshrrev_b32 v1, 6, v0', 'v_readfirstlane_b32 s100, v1', 's_lshl_b32 s101, s2, 3',
                                 's_add_u32 s100, s100, s101', 's_lshl_b32 s100, s100, 3',
                                 f's_add_u32 s100, s100, {base}', 's_memrealtime s[96:97]')]
        post = ('s_memrealtime s[98:99]', 's_waitcnt lgkmcnt(0)', 's_mov_b64 exec, 1', 'v_mov_b32 v2, s96',
                'v_mov_b32 v3, s98', 'v_mov_b32 v4, 0', 'buffer_store_dwordx2 v[2:3], v4, s[4:7], s100 offen')
        out = pre
        for it in self.items:
            if isinstance(it, Inst) and it.mn == 's_endpgm':
                out += [Inst(t) for t in post]
            out.append(it)
        self.items = out

    def _hazard_pass(self):
        items = self.items
        changed = True
        rounds = 0
        while changed:
            changed = False
            rounds += 1
            assert rounds < 50
            labpos = {it.name: i for i, it in enumerate(items) if isinstance(it, Label)}
            n = len(items)
            state_in = [None] * (n + 1)
            state_in[0] = {}
            work = [0]
            inserts = {}
            while work:
                i = work.pop()
                st = state_in[i]
                while i < n:
                    it = items[i]
                    if isinstance(it, Label):
                        nxt = st
                    else:
                        need = required(list(st.values()), it)
                        if need > 0:
                            inserts[i] = max(inserts.get(i, 0), need)
                        adv = it.nops + max(need, 0)
                        nxt = {}
                        for k, (age, p) in st.items():
                            if age + adv < MAXAGE:
                                nxt[k] = (age + adv, p)
                        if it.cls in ('valu', 'mfma', 'vmem') or (it.cls == 'salu' and ('s', 'm0') in it.wr):
                            nxt[id(it)] = (0, it)
                        if it.cls == 'branch':
                            t = labpos.get(it.target)
                            if t is not None and self._merge(state_in, t, nxt):
                                work.append(t)
                            if it.mn == 's_branch':
                                break
                        if it.mn == 's_endpgm':
                            break
                    i += 1
                    if not self._merge(state_in, i, nxt):
                        break
                    st = state_in[i]
            if inserts:
                changed = True
                new = []
                for i, it in enumerate(items):
                    if i in inserts:
                        k = inserts[i]
                        while k > 0:
                            c = min(k, 16)
                            new.append(Inst(f's_nop {c - 1}'))
                            k -= c
                    new.append(it)
                items = new
        self.items = items

    @staticmethod
    def _merge(state_in, i, st):
        cur = state_in[i]
        if cur is None:
            state_in[i] = dict(st)
            return True
        ch = False
        for k, (age, p) in st.items():
            if k not in cur or cur[k][0] > age:
                cur[k] = (age, p)
                ch = True
        return ch

    def check_regs(self):
        mv = ma = ms = -1
        for it in self.items:
            if isinstance(it, Inst):
                for r in it.rd | it.wr:
                    if r[0] == 'v':
                        mv = max(mv, r[1])
                    elif r[0] == 'a':
                        ma = max(ma, r[1])
                    elif r[0] == 's' and isinstance(r[1], int):
                        ms = max(ms, r[1])
        return mv + 1, ma + 1, ms + 1

    def finish(self):
        self._hazard_pass()
        nv, na, ns = self.check_regs()
        acc_off = max(4, (nv + 3) // 4 * 4)
        if self.vgpr:
            acc_off = max(acc_off, min(256, (self.vgpr + 3) // 4 * 4))
        na = max(na, self.agpr)
        assert acc_off <= 256 and na <= 256 and ns <= 102, (nv, na, ns)
        nfv = acc_off + na if na else max(nv, self.vgpr or 0)
        out = [f'.globl {self.name}', '.p2align 8', f'.type {self.name},@function', f'{self.name}:']
        for it in self.items:
            if isinstance(it, Label):
                out.append(f'{it.name}:')
            else:
                out.append('  ' + it.text)
        text = '\n'.join(out) + '\n'
        kd = f'''.section .rodata,"a"
.p2align 6
.amdhsa_kernel {self.name}
  .amdhsa_next_free_vgpr {nfv}
  .amdhsa_next_free_sgpr {max(ns, 16)}
  .amdhsa_accum_offset {acc_off}
  .amdhsa_group_segment_fixed_size 0
  .amdhsa_kernarg_size 112
  .amdhsa_user_sgpr_count 2
  .amdhsa_user_sgpr_kernarg_segment_ptr 1
  .amdhsa_system_sgpr_workgroup_id_x 1
{"  .amdhsa_system_sgpr_workgroup_id_y 1" + chr(10) if self.wgid_y else ""}  .amdhsa_float_denorm_mode_32 3
.end_amdhsa_kernel
.text
'''
        self.stats = (nv, na, ns, sum(isinstance(i, Inst) for i in self.items))
        return text, kd


def build_file(header_lines, launches, kernels):
    out = list(header_lines)
    for k, g, b, lds in launches:
        out.append(f'; @launch kernel={k} grid=({g},1,1) block=({b},1,1) lds={lds}')
    out.append('.amdgcn_target "amdgcn-amd-amdhsa--gfx950"')
    out.append('.text')
    kds = []
    for k in kernels:
        t, kd = k.finish()
        out.append(t)
        kds.append(kd)
    out.extend(kds)
    return '\n'.join(out) + '\n'
```

```python
from asmgen import *
from layout import *

ARG = dict(x=0, mem0=8, Wq=16, Wk=24, Wv=32, Wo=40, seg=48, bx=56, wqkv=64, wphi=72, wo2=80, out=88, dbg=96, ws=104)
NBYTES = dict(x=2048 * 1280, mem0=8 * 1280, Wq=640 * 12288, Wk=640 * 12288, Wv=640 * 12288, Wo=6144 * 1280,
              wqkv=640 * 3840, wphi=32 * 800, wo2=640 * 1280, out=2048 * 1280, dbg=256, ws=WS_BYTES)


def srd_load(k, sreg, name):
    k(f's_load_dwordx2 s[{sreg}:{sreg + 1}], s[0:1], {ARG[name]}')
    k(f's_mov_b32 s{sreg + 2}, {hex(NBYTES[name])}')
    k(f's_mov_b32 s{sreg + 3}, 0x20000')


def sdivmod(k, q, r, src, C):
    magic = -(-(1 << 32) // C)
    k(f's_mul_hi_u32 s{q}, s{src}, {hex(magic)}')
    k(f's_mul_i32 s{r}, s{q}, {C}')
    k(f's_sub_u32 s{r}, s{src}, s{r}')


def wave_lane(k, swave, vlane):
    k(f'v_lshrrev_b32 v{vlane}, 6, v0')
    k(f'v_readfirstlane_b32 s{swave}, v{vlane}')
    k(f'v_and_b32 v{vlane}, 63, v0')


def allreduce_g(k, v, tmp, op='v_add_f32'):
    k(f'v_mov_b32 v{tmp}, v{v}')
    k(f'v_permlane16_swap_b32 v{v}, v{tmp}')
    k(f'{op} v{v}, v{v}, v{tmp}')
    k(f'v_mov_b32 v{tmp}, v{v}')
    k(f'v_permlane32_swap_b32 v{v}, v{tmp}')
    k(f'{op} v{v}, v{v}, v{tmp}')


def vr(a, n):
    return f'v[{a}:{a + n - 1}]' if n > 1 else f'v{a}'


def ar(a, n):
    return f'a[{a}:{a + n - 1}]' if n > 1 else f'a{a}'


def sr(a, n):
    return f's[{a}:{a + n - 1}]' if n > 1 else f's{a}'


import struct as _struct


def f32(x):
    return hex(_struct.unpack('<I', _struct.pack('<f', x))[0])


def load_wfrags(k, nfrag, vlane16, sbase, stmp, dst=lambda i: ar(4 * i, 4)):
    k(f's_mov_b32 s{stmp}, s{sbase}')
    for i in range(nfrag):
        if i and i % 4 == 0:
            k(f's_add_u32 s{stmp}, s{stmp}, 4096')
        k(f'buffer_load_dwordx4 {dst(i)}, v{vlane16}, s[4:7], s{stmp} offen offset:{(i % 4) * 1024}')


def hb_base(k, sdst, layer_off=0):
    k(f's_add_u32 s{sdst}, s4, {HB_RES + 0x1fffff}')
    k(f's_and_b32 s{sdst}, s{sdst}, 0xffe00000')
    k(f's_sub_u32 s{sdst}, s{sdst}, s4')
    if layer_off:
        k(f's_add_u32 s{sdst}, s{sdst}, {layer_off}')


def stage_setup(k, vdma, vtr, vlane, rowstride, rowbytes, vt0, mode):
    lpr = rowbytes // 16
    magic = -(-65536 // lpr)
    k(f'v_mul_u32_u24 v{vt0}, {magic}, v{vlane}')
    k(f'v_lshrrev_b32 v{vt0}, 16, v{vt0}')
    k(f'v_mul_u32_u24 v{vdma}, {lpr}, v{vt0}')
    k(f'v_sub_u32 v{vdma}, v{vlane}, v{vdma}')
    k(f'v_lshlrev_b32 v{vdma}, 4, v{vdma}')
    k(f'v_mul_u32_u24 v{vt0}, {rowstride}, v{vt0}')
    k(f'v_add_u32 v{vdma}, v{vdma}, v{vt0}')
    k(f'v_lshrrev_b32 v{vt0}, 4, v{vlane}')
    k(f'v_mul_u32_u24 v{vt0}, {mode}, v{vt0}')
    k(f'v_bfe_u32 v{vtr}, v{vlane}, 2, 2')
    k(f'v_add_u32 v{vt0}, v{vt0}, v{vtr}')
    k(f'v_mul_u32_u24 v{vt0}, {rowbytes}, v{vt0}')
    k(f'v_and_b32 v{vtr}, 3, v{vlane}')
    k(f'v_lshl_add_u32 v{vtr}, v{vtr}, 3, v{vt0}')


class Stager:
    def __init__(self, k, srd, vdma, vtr, ssrc, slds, stmp, smask, rowstride, rowbytes, rows, ring):
        self.k, self.srd, self.vdma, self.vtr = k, srd, vdma, vtr
        self.ssrc, self.slds, self.stmp, self.smask = ssrc, slds, stmp, smask
        self.rs, self.rb, self.rows, self.ring = rowstride, rowbytes, rows, ring
        self.rpi = 60 // (rowbytes // 16)
        assert rows % self.rpi == 0 and ring % self.rpi == 0
        self.n = rows // self.rpi
        self.issued = 0
        self.order = []

    def foreign(self, n):
        self.order += [('x',)] * n

    def issue_upto(self, freed_rows):
        k = self.k
        first = True
        while self.issued < self.n and (self.issued + 1) * self.rpi <= freed_rows + self.ring:
            if first:
                k(f's_mov_b64 exec, s[{self.smask}:{self.smask + 1}]')
                first = False
            off = (self.issued * self.rpi % self.ring) * self.rb
            k(f's_add_u32 m0, s{self.slds}, {off}')
            k(f'buffer_load_dwordx4 v{self.vdma}, {sr(self.srd, 4)}, s{self.ssrc} offen lds')
            k(f's_add_u32 s{self.ssrc}, s{self.ssrc}, {self.rpi * self.rs}')
            self.order.append(('d', self.issued))
            self.issued += 1
        if not first:
            k('s_mov_b64 exec, -1')

    def wait_rows(self, upto):
        need = -(-upto // self.rpi) - 1
        pos = self.order.index(('d', need))
        self.k(f's_waitcnt vmcnt({min(63, len(self.order) - 1 - pos)})')

    def tread(self, dst, row, colbyte):
        self.k(f'ds_read_b64_tr_b16 {dst}, v{self.vtr} offset:{(row % self.ring) * self.rb + colbyte}')
```

```python
from gen_common import *
import math

SCALE_L2E = (192 ** -0.5) * math.log2(math.e)
NEG = -1e9 / (192 ** -0.5)


def make_scores():
    k = Kernel('scores_kernel', vgpr=0)
    srd_load(k, 4, 'ws')
    wave_lane(k, 3, 1)
    k('s_cmp_ge_u32 s2, 512')
    k('s_cbranch_scc1 scores_end')
    k('s_lshl_b32 s8, s2, 2')
    k('s_add_u32 s8, s8, s3')
    k('s_lshr_b32 s9, s8, 5')
    k('s_and_b32 s10, s8, 31')
    k('v_lshlrev_b32 v2, 4, v1')
    k('v_and_b32 v3, 15, v1')
    k('v_lshrrev_b32 v4, 4, v1')
    k('v_and_b32 v5, 7, v1')
    k('v_lshlrev_b32 v5, 4, v5')
    k('v_lshl_add_u32 v5, v4, 7, v5')
    k('s_lshl_b32 s11, s9, 6')
    k('s_add_u32 s11, s11, s10')
    k('s_mul_i32 s11, s11, 6144')
    k(f's_add_u32 s11, s11, {QKVF}')
    k('s_mul_i32 s12, s8, 3072')
    k(f's_add_u32 s12, s12, {KM}')
    k('s_waitcnt lgkmcnt(0)')
    QF, KF, MF = 16, 64, 112
    for (dst, add) in ((QF, 0), (KF, QKVF_M)):
        for mt in range(2):
            k(f's_add_u32 s13, s11, {add + mt * 32 * 6144}')
            k(f's_add_u32 s14, s13, 4096')
            for f in range(6):
                so = 's13' if f < 4 else 's14'
                k(f'buffer_load_dwordx4 {vr(dst + (mt * 6 + f) * 4, 4)}, v2, s[4:7], {so} offen offset:{(f % 4) * 1024}')
    for f in range(6):
        k(f'buffer_load_dwordx4 {vr(MF + f * 4, 4)}, v5, s[4:7], s12 offen offset:{f * 512}')
    k(f'v_mov_b32 v6, {f32(NEG)}')
    k('v_lshlrev_b32 v7, 2, v4')
    for r in range(4):
        k(f'v_add_u32 v8, {r}, v7')
        k(f'v_cmp_le_u32 s[{16 + 2 * r}:{17 + 2 * r}], v8, v3')
    k('s_mov_b32 s24, -1')
    k('s_mov_b32 s25, 0')
    k(f's_mov_b32 s26, {f32(SCALE_L2E)}')
    k('s_mul_i32 s27, s9, 81920')
    k(f's_add_u32 s27, s27, {PP}')
    k('s_lshl_b32 s28, s10, 10')
    k('v_add_u32 v9, s28, v2')
    k('s_lshr_b32 s28, s10, 2')
    k('s_add_u32 s28, s28, 32')
    k('s_lshl_b32 s28, s28, 10')
    k('s_and_b32 s29, s10, 3')
    k('s_lshl_b32 s29, s29, 8')
    k('s_add_u32 s28, s28, s29')
    k('v_lshlrev_b32 v10, 3, v4')
    k('v_lshl_add_u32 v10, v3, 4, v10')
    k('v_add_u32 v10, s28, v10')
    k('s_waitcnt vmcnt(0)')
    SD = 136
    tiles = [(0, KF), (0, MF), (1, KF), (1, KF + 24), (1, MF)]
    for f in range(6):
        for n, (mq, a) in enumerate(tiles):
            c = '0' if f == 0 else vr(SD + 4 * n, 4)
            k(f'v_mfma_f32_16x16x32_bf16 {vr(SD + 4 * n, 4)}, {vr(a + 4 * f, 4)}, {vr(QF + (mq * 6 + f) * 4, 4)}, {c}')
    for mq in range(2):
        xs = [SD, SD + 4] if mq == 0 else [SD + 8, SD + 12, SD + 16]
        diag = xs[-2]
        mt_ = xs[-1]
        for r in range(4):
            k(f'v_cndmask_b32 v{diag + r}, v6, v{diag + r}, s[{16 + 2 * r}:{17 + 2 * r}]')
            k(f'v_cndmask_b32 v{mt_ + r}, v6, v{mt_ + r}, s[24:25]')
        vals = [x + r for x in xs for r in range(4)]
        mx, tmp = 11, 12
        k(f'v_max3_f32 v{mx}, v{vals[0]}, v{vals[1]}, v{vals[2]}')
        rest = vals[3:]
        while rest:
            if len(rest) >= 2:
                k(f'v_max3_f32 v{mx}, v{mx}, v{rest[0]}, v{rest[1]}')
                rest = rest[2:]
            else:
                k(f'v_max_f32 v{mx}, v{mx}, v{rest[0]}')
                rest = []
        allreduce_g(k, mx, tmp, 'v_max_f32')
        k(f'v_mul_f32 v{mx}, s26, v{mx}')
        for v in vals:
            k(f'v_fma_f32 v{v}, v{v}, s26, -v{mx}')
        for v in vals:
            k(f'v_exp_f32 v{v}, v{v}')
        for r in range(4):
            k(f'v_cndmask_b32 v{mt_ + r}, 0, v{mt_ + r}, s[24:25]')
        k(f'v_add_f32 v{mx}, v{vals[0]}, v{vals[1]}')
        for v in vals[2:]:
            k(f'v_add_f32 v{mx}, v{mx}, v{v}')
        allreduce_g(k, mx, tmp)
        k(f'v_rcp_f32 v{mx}, v{mx}')
        for v in vals:
            k(f'v_mul_f32 v{v}, v{v}, v{mx}')
        o = 16 + mq * 8
        k(f'v_cvt_pk_bf16_f32 v{o}, v{xs[0]}, v{xs[0] + 1}')
        k(f'v_cvt_pk_bf16_f32 v{o + 1}, v{xs[0] + 2}, v{xs[0] + 3}')
        if mq == 0:
            k(f'v_mov_b32 v{o + 2}, 0')
            k(f'v_mov_b32 v{o + 3}, 0')
        else:
            k(f'v_cvt_pk_bf16_f32 v{o + 2}, v{xs[1]}, v{xs[1] + 1}')
            k(f'v_cvt_pk_bf16_f32 v{o + 3}, v{xs[1] + 2}, v{xs[1] + 3}')
        k(f'v_cvt_pk_bf16_f32 v{o + 4}, v{mt_}, v{mt_ + 1}')
        k(f'v_cvt_pk_bf16_f32 v{o + 5}, v{mt_ + 2}, v{mt_ + 3}')
        k(f'buffer_store_dwordx4 {vr(o, 4)}, v9, s[4:7], s27 offen')
        k('s_mov_b64 exec, s[24:25]')
        k(f'buffer_store_dwordx2 {vr(o + 4, 2)}, v10, s[4:7], s27 offen')
        k('s_mov_b64 exec, -1')
        if mq == 0:
            k('s_add_u32 s27, s27, 40960')
    k.label('scores_end')
    k('s_endpgm')
    return k, 512, 0


def make_tout(layer):
    name = f'tout{layer}_kernel'
    k = Kernel(name, vgpr=0)
    srd_load(k, 4, 'ws')
    if layer == 0:
        srd_load(k, 8, 'x')
    wave_lane(k, 3, 1)
    k('s_cmp_ge_u32 s2, 320')
    k(f's_cbranch_scc1 {name}_end')
    sdivmod(k, 12, 13, 2, 5)
    k('v_lshlrev_b32 v2, 4, v1')
    k('v_and_b32 v3, 15, v1')
    k('v_lshrrev_b32 v4, 4, v1')
    k('v_lshrrev_b32 v5, 2, v3')
    k('v_lshlrev_b32 v5, 3, v5')
    k('v_and_b32 v6, 3, v3')
    k('v_add_u32 v5, v5, v6')
    k('v_lshlrev_b32 v5, 6, v5')
    k('v_lshl_add_u32 v5, v4, 4, v5')
    k('s_lshl_b32 s14, s13, 7')
    k('s_lshl_b32 s15, s3, 5')
    k('s_add_u32 s14, s14, s15')
    k('s_lshl_b32 s15, s14, 6')
    k(f's_mul_i32 s16, s12, {32 * 40960}')
    k('s_add_u32 s16, s16, s15')
    k(f's_add_u32 s16, s16, {UU}')
    k(f's_mul_i32 s17, s12, {8 * 40960}')
    k('s_add_u32 s17, s17, s15')
    k(f's_add_u32 s17, s17, {YM}')
    k('s_mul_i32 s18, s12, 81920')
    k('s_mul_i32 s19, s3, 20480')
    k('s_add_u32 s18, s18, s19')
    k(f's_add_u32 s18, s18, {PP}')
    k('v_mul_u32_u24 v7, 1280, v3')
    k('v_lshl_add_u32 v7, v4, 4, v7')
    k(f's_mul_i32 s20, s12, {32 * 1280}')
    k('s_lshl_b32 s21, s14, 1')
    k('s_add_u32 s20, s20, s21')
    k(f's_add_u32 s21, s20, {X1}')
    k('s_waitcnt lgkmcnt(0)')
    for i in range(20):
        if i % 4 == 0:
            if i:
                k('s_add_u32 s19, s19, 4096')
                k('s_add_u32 s18, s18, 4096')
            k('s_mov_b32 m0, s19')
        k(f'buffer_load_dwordx4 v2, s[4:7], s18 offen offset:{(i % 4) * 1024} lds')
    XO = 16
    for mt in range(2):
        if layer == 0:
            k(f'buffer_load_dwordx4 {vr(XO + 4 * mt, 4)}, v7, s[8:11], s20 offen')
            if mt == 0:
                k(f's_add_u32 s20, s20, {16 * 1280}')
        else:
            if mt == 1:
                k(f's_add_u32 s22, s21, {16 * 1280}')
            k(f'buffer_load_dwordx4 {vr(XO + 4 * mt, 4)}, v7, s[4:7], {"s21" if mt == 0 else "s22"} offen')
    ND = 10
    UR = 24
    PR = UR + ND * 8
    ACC = PR + 32

    def uload(ks):
        if ks == 32:
            k('s_mov_b32 s16, s17')
        for i in range(2):
            k(f'buffer_load_dwordx4 {vr(UR + ((ks % ND) * 2 + i) * 4, 4)}, v5, s[4:7], s16 offen offset:{i * 256}')
        k('s_add_u32 s16, s16, 40960')

    def pread(ks):
        for mt in range(2):
            k(f'ds_read_b128 {vr(PR + ((ks % 4) * 2 + mt) * 4, 4)}, v{2 if mt == 0 else 8} offset:{ks * 1024}')

    k('v_add_u32 v8, 40960, v2')
    for ks in range(ND):
        uload(ks)
    k(f's_waitcnt vmcnt({2 * ND})')
    k('s_barrier')
    for ks in range(3):
        pread(ks)
    for ks in range(40):
        rem_u = min(ND - 1, 39 - ks)
        rem_p = min(2, 39 - ks)
        k(f's_waitcnt vmcnt({2 * rem_u}) lgkmcnt({2 * rem_p})')
        for i in range(2):
            for mt in range(2):
                d = ACC + (mt * 2 + i) * 4
                c = '0' if ks == 0 else vr(d, 4)
                k(f'v_mfma_f32_16x16x32_bf16 {vr(d, 4)}, {vr(UR + ((ks % ND) * 2 + i) * 4, 4)}, {vr(PR + ((ks % 4) * 2 + mt) * 4, 4)}, {c}')
        if ks + ND < 40:
            uload(ks + ND)
        if ks + 3 < 40:
            pread(ks + 3)
    k('s_mov_b32 s23, 0xffff0000')
    for mt in range(2):
        for p in range(4):
            a = ACC + mt * 8 + 2 * p
            k(f'v_lshlrev_b32 v9, 16, v{XO + 4 * mt + p}')
            k(f'v_and_b32 v10, s23, v{XO + 4 * mt + p}')
            k(f'v_add_f32 v9, v9, v{a}')
            k(f'v_add_f32 v10, v10, v{a + 1}')
            k(f'v_cvt_pk_bf16_f32 v{XO + 4 * mt + p}, v9, v10')
        k(f'buffer_store_dwordx4 {vr(XO + 4 * mt, 4)}, v7, s[4:7], s21 offen')
        if mt == 0:
            k(f's_add_u32 s21, s21, {16 * 1280}')
    k.label(f'{name}_end')
    k('s_endpgm')
    return k, 320, 81920
```

```python
from gen_common import *
import math

L2E = math.log2(math.e)
PH = False


def ph(k, i):
    if PH:
        k(f's_memrealtime s[{64 + 2 * i}:{65 + 2 * i}]')


def ph_store(k, n, base):
    if PH:
        k('s_waitcnt lgkmcnt(0)')
        for i in range(n):
            k(f'v_writelane_b32 v2, s{64 + 2 * i}, {i}')
        k('v_lshlrev_b32 v3, 2, v1')
        k('s_lshl_b32 s60, s2, 3')
        k('s_add_u32 s60, s60, s3')
        k('s_lshl_b32 s60, s60, 6')
        k(f's_add_u32 s60, s60, {base}')
        k('s_mov_b64 exec, 0xffff')
        k('buffer_store_dword v2, v3, s[4:7], s60 offen')

SPIN_MAX = 1 << 18


def emit_ln_fast(k, raw, f, t0, t1):
    k('s_mov_b32 s30, 0xffff0000')
    for i in range(80):
        k(f'v_lshlrev_b32 v{f + 2 * i}, 16, v{raw + i}')
        k(f'v_and_b32 v{f + 2 * i + 1}, s30, v{raw + i}')
        if i == 1:
            k(f'v_pk_add_f32 {vr(t0, 2)}, {vr(f, 2)}, {vr(f + 2, 2)}')
        elif i > 1:
            k(f'v_pk_add_f32 {vr(t0, 2)}, {vr(t0, 2)}, {vr(f + 2 * i, 2)}')
    k(f'v_add_f32 v{t0}, v{t0}, v{t0 + 1}')
    allreduce_g(k, t0, t0 + 1)
    k(f'v_mul_f32 v{t0}, {f32(-1.0 / 640)}, v{t0}')
    k(f'v_mov_b32 v{t0 + 1}, v{t0}')
    for i in range(80):
        k(f'v_pk_add_f32 {vr(f + 2 * i, 2)}, {vr(f + 2 * i, 2)}, {vr(t0, 2)}')
        if i == 0:
            k(f'v_pk_mul_f32 {vr(t1, 2)}, {vr(f, 2)}, {vr(f, 2)}')
        else:
            k(f'v_pk_fma_f32 {vr(t1, 2)}, {vr(f + 2 * i, 2)}, {vr(f + 2 * i, 2)}, {vr(t1, 2)}')
    k(f'v_add_f32 v{t1}, v{t1}, v{t1 + 1}')
    allreduce_g(k, t1, t1 + 1)
    k(f'v_mov_b32 v{t0}, {f32(1e-5)}')
    k(f'v_fmac_f32 v{t0}, {f32(1.0 / 640)}, v{t1}')
    k(f'v_rsq_f32 v{t0}, v{t0}')
    k(f'v_mov_b32 v{t0 + 1}, v{t0}')
    for i in range(80):
        k(f'v_pk_mul_f32 {vr(f + 2 * i, 2)}, {vr(f + 2 * i, 2)}, {vr(t0, 2)}')
        k(f'v_cvt_pk_bf16_f32 v{raw + i}, v{f + 2 * i}, v{f + 2 * i + 1}')


def red3(k, op3, op2, dst, vals):
    k(f'{op3} v{dst}, v{vals[0]}, v{vals[1]}, v{vals[2]}')
    rest = vals[3:]
    while rest:
        if len(rest) >= 2:
            k(f'{op3} v{dst}, v{dst}, v{rest[0]}, v{rest[1]}')
            rest = rest[2:]
        else:
            k(f'{op2} v{dst}, v{dst}, v{rest[0]}')
            rest = []


def emit_phi(k, p, a, out, t):
    vals = list(range(p, p + 20))
    mx, mn = t, t + 1
    red3(k, 'v_max3_f32', 'v_max_f32', mx, vals)
    red3(k, 'v_min3_f32', 'v_min_f32', mn, vals)
    k(f'v_mul_f32 v{mx}, s31, v{mx}')
    k(f'v_mul_f32 v{mn}, s31, v{mn}')
    for f in range(20):
        k(f'v_fma_f32 v{a + f}, v{p + f}, s31, -v{mx}')
        k(f'v_fma_f32 v{a + 20 + f}, -v{p + f}, s31, v{mn}')
    for f in range(40):
        k(f'v_exp_f32 v{a + f}, v{a + f}')
    for h in range(2):
        b = a + 20 * h
        s = t + 2 * h
        k(f'v_pk_add_f32 {vr(s, 2)}, {vr(b, 2)}, {vr(b + 2, 2)}')
        for i in range(2, 10):
            k(f'v_pk_add_f32 {vr(s, 2)}, {vr(s, 2)}, {vr(b + 2 * i, 2)}')
        k(f'v_add_f32 v{s}, v{s}, v{s + 1}')
        k(f'v_rcp_f32 v{s}, v{s}')
        k(f'v_mov_b32 v{s + 1}, v{s}')
        for i in range(10):
            k(f'v_pk_mul_f32 {vr(b + 2 * i, 2)}, {vr(b + 2 * i, 2)}, {vr(s, 2)}')
            k(f'v_cvt_pk_bf16_f32 v{out + 10 * h + i}, v{b + 2 * i}, v{b + 2 * i + 1}')


def make_b1():
    k = Kernel('b1_kernel', vgpr=0)
    PHK = 61440
    VR = PHK + 24576
    srd_load(k, 4, 'ws')
    wave_lane(k, 3, 1)
    k('s_cmp_ge_u32 s2, 256')
    k('s_cbranch_scc1 b1_end')
    ph(k, 0)
    k('s_bfe_u32 s8, s2, 0x20001')
    k('s_lshl_b32 s8, s8, 3')
    k('s_lshr_b32 s9, s2, 5')
    k('s_add_u32 s8, s8, s9')
    k('s_and_b32 s9, s2, 1')
    k('s_lshl_b32 s9, s9, 2')
    k('s_bfe_u32 s10, s2, 0x20003')
    k('s_add_u32 s9, s9, s10')
    k('s_lshl_b32 s10, s8, 2')
    k('s_add_u32 s10, s10, s3')
    k('v_lshlrev_b32 v2, 4, v1')
    k('v_add_u32 v3, 61440, v2')
    k('v_add_u32 v6, 122880, v2')
    k('v_and_b32 v4, 15, v1')
    k('v_lshrrev_b32 v5, 4, v1')
    k('s_mul_i32 s11, s10, 20480')
    k(f's_add_u32 s11, s11, {X1}')
    k(f's_mov_b32 s31, {f32(L2E)}')
    k('s_waitcnt lgkmcnt(0)')
    k('s_cmp_eq_u32 s3, 4')
    k('s_cbranch_scc0 b1_comp')
    k(f's_mul_i32 s12, s9, {20 * 15360}')
    k(f's_add_u32 s12, s12, {WBP}')
    k('s_sleep 2')

    def dma(t):
        for i in range(15):
            if i % 4 == 0:
                k(f's_mov_b32 m0, {(t % 10) * 15360 + (i // 4) * 4096}')
                if i:
                    k('s_add_u32 s12, s12, 4096')
            k(f'buffer_load_dwordx4 v2, s[4:7], s12 offen offset:{(i % 4) * 1024} lds')
        k(f's_add_u32 s12, s12, {15360 - 3 * 4096}')

    for t in range(10):
        if t >= 4:
            k('s_waitcnt vmcnt(45)')
        dma(t)
    nissued = 10
    for p in range(10):
        k(f's_waitcnt vmcnt({min(60, 15 * (nissued - 2 * p - 2))})')
        k('s_barrier')
        if p >= 1 and nissued < 20:
            dma(nissued)
            dma(nissued + 1)
            nissued += 2
    k('s_barrier')
    k('s_endpgm')
    k.label('b1_comp')
    RAW = 16
    load_wfrags(k, 20, 2, 11, 14, dst=lambda i: vr(RAW + 4 * i, 4))
    k('s_waitcnt vmcnt(0)')
    ph(k, 1)
    emit_ln_fast(k, RAW, 96, 8, 10)
    ph(k, 2)
    WR = 96
    ACC = 136
    PDW = 8
    for p in range(10):
        k('s_barrier')
        if p in (0, 2, 4, 6, 8):
            ph(k, 3 + p // 2)

        def rd(n):
            t = 2 * p + n // 15
            off = (t % 10) * 15360 + (n % 15) * 1024
            va, off = (2, off) if off < 61440 else ((3, off - 61440) if off < 122880 else (6, off - 122880))
            k(f'ds_read_b128 {vr(WR + (n % 10) * 4, 4)}, v{va} offset:{off}')
        for n in range(PDW):
            rd(n)
        for n in range(30):
            tt, tau = n // 15, n % 15
            t = 2 * p + tt
            if n % 2 == 0:
                k(f's_waitcnt lgkmcnt({max(0, min(PDW - 2, 28 - n))})')
            d = ACC + 4 * tau
            cc = '0' if t == 0 else vr(d, 4)
            w = vr(WR + (n % 10) * 4, 4)
            h = vr(RAW + 4 * t, 4)
            if tau < 10:
                k(f'v_mfma_f32_16x16x32_bf16 {vr(d, 4)}, {w}, {h}, {cc}')
            else:
                k(f'v_mfma_f32_16x16x32_bf16 {vr(d, 4)}, {h}, {w}, {cc}')
            if n + PDW < 30:
                rd(n + PDW)
    ph(k, 8)
    OUTP = 56
    emit_phi(k, ACC + 20, 16, OUTP, 8)
    k('s_lshl_b32 s14, s3, 2')
    k('v_add_u32 v7, s14, v5')
    k('v_mul_u32_u24 v7, 1536, v7')
    k('v_mul_u32_u24 v12, 96, v4')
    k(f'v_add3_u32 v7, v7, v12, v3')
    k('v_sub_u32 v7, v7, v2')
    for i in range(5):
        k(f'ds_write_b128 v7, {vr(OUTP + 4 * i, 4)} offset:{16 * i}')
    k('v_lshlrev_b32 v12, 3, v1')
    k(f's_mul_i32 s14, s3, 2560')
    k(f's_add_u32 s14, s14, {VR}')
    k('v_add_u32 v13, s14, v12')
    for i in range(5):
        d = ACC + 40 + 4 * i
        k(f'v_cvt_pk_bf16_f32 v{d}, v{d}, v{d + 1}')
        k(f'v_cvt_pk_bf16_f32 v{d + 1}, v{d + 2}, v{d + 3}')
        k(f'ds_write_b64 v13, {vr(d, 2)} offset:{512 * i}')
    ph(k, 9)
    OUTQ = 76
    emit_phi(k, ACC, 16, OUTQ, 8)
    k('s_lshl_b32 s14, s10, 3')
    k('s_add_u32 s14, s14, s9')
    k('s_mul_i32 s14, s14, 5120')
    k(f's_add_u32 s14, s14, {PQ}')
    k('s_add_u32 s15, s14, 4096')
    for i in range(5):
        k(f'buffer_store_dwordx4 {vr(OUTQ + 4 * i, 4)}, v2, s[4:7], {"s14" if i < 4 else "s15"} offen offset:{(i % 4) * 1024}')
    k('s_waitcnt lgkmcnt(0)')
    k('s_barrier')
    ph(k, 10)
    k('v_lshrrev_b32 v7, 2, v1')
    k('v_mul_u32_u24 v7, 96, v7')
    k('v_and_b32 v13, 3, v1')
    k('v_lshl_add_u32 v7, v13, 3, v7')
    k('s_mul_i32 s14, s3, 1536')
    k(f's_add_u32 s14, s14, {PHK}')
    k('v_add_u32 v7, s14, v7')
    k('s_lshl_b32 s14, s3, 9')
    k(f's_add_u32 s14, s14, {VR}')
    k('v_add_u32 v13, s14, v12')
    AF, BF, DD = 96, 120, 136
    for kap in range(2):
        for ft in range(3):
            for hf in range(2):
                k(f'ds_read_b64_tr_b16 {vr(AF + (kap * 3 + ft) * 4 + 2 * hf, 2)}, v7 offset:{(2 * kap + hf) * 6144 + ft * 32}')
        for nt in range(2):
            for hf in range(2):
                k(f'ds_read_b64 {vr(BF + (kap * 2 + nt) * 4 + 2 * hf, 2)}, v13 offset:{(2 * kap + hf) * 2560 + nt * 512}')
    k('s_mov_b32 s16, 0x80008000')
    k('s_mov_b32 s17, 0x00010001')
    k('s_cmp_lt_u32 s3, 3')
    k('s_cselect_b32 s18, 0, s17')
    k('s_cselect_b32 s19, 0, s17')
    k('s_cselect_b32 s20, s16, 0')
    k('s_cselect_b32 s21, s16, 0')
    k('v_mov_b32 v14, 0x3f803f80')
    k('s_waitcnt lgkmcnt(0)')
    for kap in range(2):
        for nt in range(2):
            for r in range(4):
                b = BF + (kap * 2 + nt) * 4 + r
                k(f'v_cndmask_b32 v{b}, v{b}, v14, s[{18 + 2 * nt}:{19 + 2 * nt}]')
    for kap in range(2):
        for ft in range(3):
            for nt in range(2):
                d = DD + (ft * 2 + nt) * 4
                cc = '0' if kap == 0 else vr(d, 4)
                k(f'v_mfma_f32_16x16x32_bf16 {vr(d, 4)}, {vr(AF + (kap * 3 + ft) * 4, 4)}, {vr(BF + (kap * 2 + nt) * 4, 4)}, {cc}')
    k('s_lshl_b32 s14, s8, 3')
    k('s_add_u32 s14, s14, s9')
    k('s_lshl_b32 s14, s14, 2')
    k('s_add_u32 s14, s14, s3')
    k('s_mul_i32 s14, s14, 6144')
    k(f's_add_u32 s14, s14, {KVP}')
    k('s_add_u32 s15, s14, 4096')
    for i in range(6):
        k(f'buffer_store_dwordx4 {vr(DD + 4 * i, 4)}, v2, s[4:7], {"s14" if i < 4 else "s15"} offen offset:{(i % 4) * 1024}')
    ph(k, 11)
    ph_store(k, 12, DIAG)
    k.label('b1_end')
    k('s_endpgm')
    return k, 256, 153600


def make_bred():
    k = Kernel('bred_kernel', vgpr=0)
    srd_load(k, 4, 'ws')
    k('s_cmp_ge_u32 s2, 105')
    k('s_cbranch_scc1 bred_end')
    k('s_lshl_b32 s8, s2, 8')
    k('v_add_u32 v1, s8, v0')
    k('v_lshrrev_b32 v2, 2, v1')
    k('v_and_b32 v3, 3, v1')
    k(f's_mov_b32 s9, {hex(-(-(1 << 32) // 210))}')
    k('v_mul_hi_u32 v4, v2, s9')
    k('v_mul_u32_u24 v5, 210, v4')
    k('v_sub_u32 v5, v2, v5')
    k('v_mul_u32_u24 v6, 205, v5')
    k('v_lshrrev_b32 v6, 11, v6')
    k('v_mul_u32_u24 v7, 10, v6')
    k('v_sub_u32 v7, v5, v7')
    k('v_and_b32 v8, 3, v4')
    k('v_lshl_add_u32 v9, v8, 2, v6')
    k('v_cmp_gt_u32 vcc, 3, v8')
    k('v_cndmask_b32 v10, 0, 31, vcc')
    k('v_cmp_eq_u32 vcc, 20, v6')
    k('v_cndmask_b32 v9, v9, v10, vcc')
    k('v_lshrrev_b32 v10, 4, v9')
    k('v_and_b32 v9, 15, v9')
    k('v_lshrrev_b32 v11, 2, v7')
    k('v_lshl_add_u32 v10, v11, 1, v10')
    k('v_lshlrev_b32 v10, 10, v10')
    k('v_lshl_add_u32 v10, v9, 4, v10')
    k('v_and_b32 v11, 3, v7')
    k('v_lshl_add_u32 v10, v11, 8, v10')
    k('v_mul_u32_u24 v11, 6144, v4')
    k('v_add_u32 v10, v10, v11')
    k(f'v_mul_u32_u24 v11, {8 * 32 * 6144}, v3')
    k('v_add_u32 v10, v10, v11')
    k(f's_mov_b32 s10, {KVP}')
    k('s_waitcnt lgkmcnt(0)')
    for i in range(8):
        k(f'buffer_load_dwordx4 {vr(16 + 4 * i, 4)}, v10, s[4:7], s10 offen')
        if i < 7:
            k(f's_add_u32 s10, s10, {32 * 6144}')
    k('v_lshrrev_b32 v11, 2, v4')
    k('v_mul_u32_u24 v11, 6, v11')
    k('v_lshrrev_b32 v12, 2, v6')
    k('v_add_u32 v11, v11, v12')
    k('v_mul_u32_u24 v11, 5, v11')
    k('v_lshrrev_b32 v12, 1, v7')
    k('v_add_u32 v11, v11, v12')
    k('v_lshlrev_b32 v11, 8, v11')
    k('v_lshl_add_u32 v11, v8, 6, v11')
    k('v_and_b32 v12, 3, v6')
    k('v_lshl_add_u32 v11, v12, 4, v11')
    k('v_and_b32 v12, 1, v7')
    k('v_lshl_add_u32 v11, v12, 3, v11')
    k(f's_mov_b32 s10, {KVF}')
    k('s_mov_b32 s12, 0x11111111')
    k('s_mov_b32 s13, 0x11111111')
    k('s_waitcnt vmcnt(0)')
    for st in (16, 8, 4):
        for b in range(16, 16 + st, 2):
            k(f'v_pk_add_f32 {vr(b, 2)}, {vr(b, 2)}, {vr(b + st, 2)}')
    for dp in ('quad_perm:[1,0,3,2]', 'quad_perm:[2,3,0,1]'):
        for r in range(4):
            k(f'v_add_f32_dpp v{16 + r}, v{16 + r}, v{16 + r} {dp} row_mask:0xf bank_mask:0xf')
    k('v_cvt_pk_bf16_f32 v16, v16, v17')
    k('v_cvt_pk_bf16_f32 v17, v18, v19')
    k('s_mov_b64 exec, s[12:13]')
    k('buffer_store_dwordx2 v[16:17], v11, s[4:7], s10 offen')
    k.label('bred_end')
    k('s_endpgm')
    return k, 105, 0


def make_b2(final):
    name = 'b2f_kernel' if final else 'b2_kernel'
    k = Kernel(name, vgpr=0)
    srd_load(k, 4, 'ws')
    if final:
        srd_load(k, 24, 'out')
    else:
        srd_load(k, 24, 'dbg')
    wave_lane(k, 3, 1)
    k('s_cmp_ge_u32 s2, 256')
    k(f's_cbranch_scc1 {name}_end')
    ph(k, 0)
    k('s_and_b32 s8, s2, 7')
    k('s_lshl_b32 s8, s8, 3')
    k('s_lshr_b32 s9, s2, 5')
    k('s_add_u32 s8, s8, s9')
    k('s_bfe_u32 s9, s2, 0x20003')
    k('v_lshlrev_b32 v2, 4, v1')
    k('v_and_b32 v4, 15, v1')
    k('v_lshrrev_b32 v5, 4, v1')
    k('v_mul_u32_u24 v6, 1280, v4')
    k('v_lshl_add_u32 v6, v5, 4, v6')
    k('s_mul_i32 s10, s9, 5')
    k('s_add_u32 s10, s10, s3')
    k(f's_mul_i32 s11, s8, {32 * 1280}')
    k('s_lshl_b32 s12, s10, 6')
    k('s_add_u32 s11, s11, s12')
    k('s_mul_i32 s12, s8, 40')
    k('s_add_u32 s12, s12, s10')
    k('s_lshl_b32 s12, s12, 10')
    k(f's_add_u32 s22, s12, {HF}')
    k(f's_add_u32 s12, s12, {X1}')
    k('s_mul_i32 s14, s10, 40960')
    k(f's_add_u32 s14, s14, {WO2P}')
    k('v_add_u32 v3, 20480, v2')
    k('v_lshrrev_b32 v7, 2, v4')
    k('v_cmp_eq_u32 vcc, v7, v5')
    k('v_lshlrev_b32 v7, 4, v4')
    LKV = 40960
    k('s_mov_b64 s[20:21], vcc')
    k('s_mul_i32 s15, s3, 15360')
    k(f's_add_u32 s15, s15, {LKV}')
    k('v_add_u32 v7, s15, v7')
    k('s_waitcnt lgkmcnt(0)')
    XO, WR, BQ, AR, AC = 16, 24, 56, 136, 196

    def wload(ks, _=True):
        k(f'buffer_load_dwordx4 {vr(WR + (ks % 10) * 8, 4)}, v2, s[4:7], s14 offen')
        k(f'buffer_load_dwordx4 {vr(WR + (ks % 10) * 8 + 4, 4)}, v3, s[4:7], s14 offen')
        k('s_add_u32 s14, s14, 1024')

    k('s_cmp_eq_u32 s3, 4')
    k(f's_cbranch_scc1 {name}_ph2')
    k('s_mul_i32 s16, s3, 15360')
    k(f's_add_u32 s16, s16, {KVF}')
    for i in range(15):
        if i % 4 == 0:
            if i:
                k('s_add_u32 s15, s15, 4096')
                k('s_add_u32 s16, s16, 4096')
            k('s_mov_b32 m0, s15')
        k(f'buffer_load_dwordx4 v2, s[4:7], s16 offen offset:{(i % 4) * 1024} lds')
    k('s_lshl_b32 s15, s8, 4')
    k('s_lshl_b32 s16, s3, 1')
    k('s_add_u32 s15, s15, s16')
    k('s_mul_i32 s15, s15, 5120')
    k(f's_add_u32 s15, s15, {PQ}')
    for hgl in range(2):
        for mt in range(2):
            k(f's_add_u32 s17, s15, {mt * 40960 + hgl * 5120}')
            k('s_add_u32 s18, s17, 4096')
            for n in range(5):
                k(f'buffer_load_dwordx4 {vr(BQ + (mt * 10 + hgl * 5 + n) * 4, 4)}, v2, s[4:7], {"s17" if n < 4 else "s18"} offen offset:{(n % 4) * 1024}')
    for ks in range(4):
        wload(ks)
    for r in range(60):
        k(f'v_mov_b32 v{AR + r}, 0')

    def aload(sg):
        k('s_mov_b64 exec, s[20:21]')
        for kap in range(5):
            k(f'ds_read_b128 {vr(AR + ((sg % 3) * 5 + kap) * 4, 4)}, v7 offset:{sg * 1280 + kap * 256}')
        k('s_mov_b64 exec, -1')

    k('s_waitcnt vmcnt(28)')
    for sg in range(3):
        aload(sg)
    k('s_mul_i32 s17, s3, 5120')
    k('v_add_u32 v9, s17, v2')
    k(f'v_mov_b32 v10, {f32(1e-6)}')
    for sg in range(12):
        hgl, t = sg // 6, sg % 6
        if sg == 0:
            k('s_waitcnt vmcnt(18)')
        if sg == 6:
            k('s_waitcnt vmcnt(8)')
        k(f's_waitcnt lgkmcnt({5 * min(2, 11 - sg) if sg != 6 else 5})')
        if sg in (0, 6):
            ph(k, 1 + sg // 6)
        for kap in range(5):
            for mt in range(2):
                d = AC + (t * 2 + mt) * 4
                cc = '0' if kap == 0 else vr(d, 4)
                k(f'v_mfma_f32_16x16x32_bf16 {vr(d, 4)}, {vr(AR + ((sg % 3) * 5 + kap) * 4, 4)}, {vr(BQ + (mt * 10 + hgl * 5 + kap) * 4, 4)}, {cc}')
        if sg + 3 < 12:
            aload(sg + 3)
        if t == 5:
            for mt in range(2):
                den = AC + (10 + mt) * 4
                k(f'v_add_f32 v{den}, v{den}, v10')
                k(f'v_rcp_f32 v{den}, v{den}')
                k(f'v_mov_b32 v{den + 1}, v{den}')
                ob = 244 + (2 if hgl else 0)
                for tt in range(5):
                    d = AC + (tt * 2 + mt) * 4
                    for p in range(2):
                        k(f'v_pk_mul_f32 {vr(d + 2 * p, 2)}, {vr(d + 2 * p, 2)}, {vr(den, 2)}')
                        k(f'v_cvt_pk_bf16_f32 v{ob + 2 * tt + p}, v{d + 2 * p}, v{d + 2 * p + 1}')
                mo = mt * 20480
                if hgl == 0:
                    k(f'ds_write_b128 v9, {vr(244, 4)} offset:{mo}')
                    k(f'ds_write_b128 v9, {vr(248, 4)} offset:{mo + 1024}')
                    k(f'ds_write_b64 v9, {vr(252, 2)} offset:{mo + 2048}')
                else:
                    k(f'ds_write_b64 v9, {vr(246, 2)} offset:{mo + 2048 + 8}')
                    k(f'ds_write_b128 v9, {vr(248, 4)} offset:{mo + 3072}')
                    k(f'ds_write_b128 v9, {vr(252, 4)} offset:{mo + 4096}')
                k('s_waitcnt lgkmcnt(0)')
    k(f's_branch {name}_ph2b')
    k.label(f'{name}_ph2')
    for ks in range(4):
        wload(ks, False)
    k.label(f'{name}_ph2b')
    ph(k, 3)
    for ks in range(4, 10):
        wload(ks)
    k(f'buffer_load_dwordx4 {vr(XO, 4)}, v2, s[4:7], s12 offen')
    k(f'buffer_load_dwordx4 {vr(XO + 4, 4)}, v3, s[4:7], s12 offen')
    k('s_barrier')
    ph(k, 4)
    OR, A2 = 136, 168

    def oread(ks):
        for mt in range(2):
            k(f'ds_read_b128 {vr(OR + ((ks % 4) * 2 + mt) * 4, 4)}, v{2 + mt} offset:{ks * 1024}')
    for ks in range(3):
        oread(ks)
    for ks in range(20):
        k(f's_waitcnt vmcnt({2 * min(9, 19 - ks) + (2 if ks < 10 else 0) - (0 if ks < 10 else 0)}) lgkmcnt({2 * min(2, 19 - ks)})')
        for i in range(2):
            for mt in range(2):
                d = A2 + (mt * 2 + i) * 4
                cc = '0' if ks == 0 else vr(d, 4)
                k(f'v_mfma_f32_16x16x32_bf16 {vr(d, 4)}, {vr(WR + (ks % 10) * 8 + 4 * i, 4)}, {vr(OR + ((ks % 4) * 2 + mt) * 4, 4)}, {cc}')
        if ks + 10 < 20:
            wload(ks + 10)
        if ks + 3 < 20:
            oread(ks + 3)
    ph(k, 5)
    k('s_mov_b32 s23, 0xffff0000')
    for mt in range(2):
        for p in range(4):
            a = A2 + mt * 8 + 2 * p
            k(f'v_lshlrev_b32 v10, 16, v{XO + 4 * mt + p}')
            k(f'v_and_b32 v11, s23, v{XO + 4 * mt + p}')
            k(f'v_pk_add_f32 {vr(a, 2)}, {vr(a, 2)}, v[10:11]')
            k(f'v_cvt_pk_bf16_f32 v{XO + 4 * mt + p}, v{a}, v{a + 1}')
    if final:
        k(f's_add_u32 s12, s11, {16 * 1280}')
        k(f'buffer_store_dwordx4 {vr(XO, 4)}, v6, s[24:27], s11 offen')
        k(f'buffer_store_dwordx4 {vr(XO + 4, 4)}, v6, s[24:27], s12 offen')
    else:
        ST = 24
        for mt in range(2):
            a = A2 + mt * 8
            m, q = ST + 2 * mt, ST + 2 * mt + 1
            k(f'v_pk_add_f32 v[10:11], {vr(a, 2)}, {vr(a + 2, 2)}')
            k(f'v_pk_add_f32 v[12:13], {vr(a + 4, 2)}, {vr(a + 6, 2)}')
            k('v_pk_add_f32 v[10:11], v[10:11], v[12:13]')
            k(f'v_add_f32 v{m}, v10, v11')
            allreduce_g(k, m, 10)
            k(f'v_mul_f32 v{m}, {f32(1.0 / 32)}, v{m}')
            for r in range(8):
                k(f'v_sub_f32 v10, v{a + r}, v{m}')
                if r == 0:
                    k(f'v_mul_f32 v{q}, v10, v10')
                else:
                    k(f'v_fmac_f32 v{q}, v10, v10')
            allreduce_g(k, q, 10)
            k(f'v_and_b32 v{m}, -2, v{m}')
            k(f'v_and_b32 v{q}, -2, v{q}')
        k('s_mul_i32 s15, s8, 5120')
        k(f's_add_u32 s15, s15, {STB}')
        k('s_lshl_b32 s16, s10, 7')
        k('s_add_u32 s16, s16, s15')
        k('v_lshlrev_b32 v8, 3, v4')
        k('s_mov_b64 exec, 0xffff')
        k(f'buffer_store_dwordx2 {vr(ST, 2)}, v8, s[4:7], s16 offen sc1')
        k(f'buffer_store_dwordx2 {vr(ST + 2, 2)}, v8, s[4:7], s16 offen offset:2560 sc1')
        k('s_mov_b64 exec, -1')
        k(f'buffer_store_dwordx4 {vr(XO, 4)}, v2, s[4:7], s12 offen')
        k(f'buffer_store_dwordx4 {vr(XO + 4, 4)}, v3, s[4:7], s12 offen')
        k('v_mul_u32_u24 v9, 640, v5')
        k('v_add_u32 v8, v8, v9')
        k('s_mov_b32 s17, 0')
        ph(k, 6)
        PL = 32
        k.label(f'{name}_poll')
        for mt in range(2):
            for i in range(5):
                k(f'buffer_load_dwordx2 {vr(PL + (mt * 5 + i) * 2, 2)}, v8, s[4:7], s15 offen offset:{mt * 2560 + i * 128} sc1')
        k('s_waitcnt vmcnt(0)')
        red3(k, 'v_or3_b32', 'v_or_b32', 10, list(range(PL, PL + 20)))
        k('v_and_b32 v10, 1, v10')
        k('v_cmp_ne_u32 vcc, 0, v10')
        k(f's_cbranch_vccz {name}_ok')
        k('s_add_u32 s17, s17, 1')
        k(f's_cmp_lt_u32 s17, {SPIN_MAX}')
        k(f's_cbranch_scc1 {name}_poll')
        k('v_mov_b32 v10, 0x2000')
        k('v_mov_b32 v11, 68')
        k('buffer_store_dword v10, v11, s[24:27], 0 offen')
        k('s_endpgm')
        k.label(f'{name}_ok')
        ph(k, 7)
        for mt in range(2):
            b = PL + mt * 10
            a = A2 + mt * 8
            k(f'v_add_f32 v10, v{b}, v{b + 2}')
            k(f'v_add_f32 v11, v{b + 4}, v{b + 6}')
            k(f'v_add3_u32 v12, 0, 0, 0') if False else None
            k(f'v_add_f32 v10, v10, v{b + 8}')
            k('v_add_f32 v10, v10, v11')
            allreduce_g(k, 10, 11)
            k(f'v_mul_f32 v10, {f32(1.0 / 20)}, v10')
            k('v_mov_b32 v12, 0')
            for i in range(5):
                k(f'v_sub_f32 v11, v{b + 2 * i}, v10')
                k('v_fmac_f32 v12, v11, v11')
            k(f'v_mul_f32 v12, {f32(32.0)}, v12')
            for i in range(5):
                k(f'v_add_f32 v12, v12, v{b + 2 * i + 1}')
            allreduce_g(k, 12, 11)
            k(f'v_mov_b32 v11, {f32(1e-5)}')
            k(f'v_fmac_f32 v11, {f32(1.0 / 640)}, v12')
            k('v_rsq_f32 v11, v11')
            k('v_mul_f32 v10, v10, v11')
            for r in range(8):
                k(f'v_fma_f32 v{a + r}, v{a + r}, v11, -v10')
            o = 60 + mt * 4
            for p in range(4):
                k(f'v_cvt_pk_bf16_f32 v{o + p}, v{a + 2 * p}, v{a + 2 * p + 1}')
            k(f'buffer_store_dwordx4 {vr(o, 4)}, v{2 + mt}, s[4:7], s22 offen')
    ph(k, 8)
    if not final:
        ph_store(k, 9, DIAG + (1 << 20))
    k.label(f'{name}_end')
    k('s_endpgm')
    return k, 256, 40960 + 61440
```

```python
from gen_common import *
import k_rec, k_prep
from k_rec import OPT, S_LAYER, S_FL, S_PX, S_DBG, SPIN_MAX
from k_attn import SCALE_L2E, NEG

NAME = 'mega'
L_Q = 122880
LDS_BYTES = 163840
S_WSRD, S_WSRD2, M_60 = 92, 96, 82
S_HEAD, S_KIND, S_WG = 80, 81, 79
S_XS = 84


STAMPS = False
ST2 = DIAG + (4 << 20)
FL_P = FL_Q


def wstamp(k, idx):
    if not STAMPS:
        return
    lab = k.newlabel('ws')
    k('s_cmp_lg_u32 s3, 0')
    k(f's_cbranch_scc1 {lab}')
    k('s_memrealtime s[88:89]')
    k(f's_lshl_b32 s90, s{S_WG}, 6')
    k(f's_add_u32 s90, s90, {ST2 + 4 * idx}')
    k('s_waitcnt lgkmcnt(0)')
    k('v_mov_b32 v250, s88')
    k('v_mov_b32 v251, 0')
    k('s_mov_b64 exec, 1')
    k('buffer_store_dword v250, v251, s[4:7], s90 offen')
    k('s_mov_b64 exec, -1')
    k.label(lab)


def poll_min(k, loads, sneed, vt, srdy=None, sspin=30, slp=8, xlane=False):
    lab = k.newlabel('pm')
    if srdy is not None:
        k(f's_cmp_ge_u32 s{srdy}, s{sneed}')
        k(f's_cbranch_scc1 {lab}_ok')
    k(f's_mov_b32 s{sspin}, 0')
    k.label(lab)
    regs = []
    r = vt
    for (vo, so, wd) in loads:
        sfx = {1: 'dword', 2: 'dwordx2', 4: 'dwordx4'}[wd]
        if wd > 1:
            r = (r + wd - 1) // wd * wd
        k(f'buffer_load_{sfx} {vr(r, wd)}, v{vo}, s[4:7], s{so} offen sc1')
        regs += list(range(r, r + wd))
        r += wd if wd > 1 else 1
    k('s_waitcnt vmcnt(0)')
    rest = regs[1:]
    while rest:
        if len(rest) >= 2:
            k(f'v_min3_u32 v{vt}, v{vt}, v{rest[0]}, v{rest[1]}')
            rest = rest[2:]
        else:
            k(f'v_min_u32 v{vt}, v{vt}, v{rest[0]}')
            rest = []
    if xlane:
        for dp in ('quad_perm:[1,0,3,2]', 'quad_perm:[2,3,0,1]', 'row_half_mirror', 'row_mirror'):
            k(f'v_min_u32_dpp v{vt}, v{vt}, v{vt} {dp} row_mask:0xf bank_mask:0xf')
        allreduce_g(k, vt, vt + 1, 'v_min_u32')
    if srdy is not None:
        k(f'v_readfirstlane_b32 s{srdy}, v{vt}')
        k(f's_cmp_ge_u32 s{srdy}, s{sneed}')
        k(f's_cbranch_scc1 {lab}_ok')
    else:
        k(f'v_cmp_gt_u32 vcc, s{sneed}, v{vt}')
        k(f's_cbranch_vccz {lab}_ok')
    k(f's_sleep {slp}')
    k(f's_add_u32 s{sspin}, s{sspin}, 1')
    k(f's_cmp_lt_u32 s{sspin}, {SPIN_MAX}')
    k(f's_cbranch_scc1 {lab}')
    k(f's_branch {NAME}_fail')
    k.label(lab + '_ok')


def put_flag(k, sval, sflag, vt, vzero):
    k(f'v_mov_b32 v{vt}, s{sval}')
    k('s_mov_b64 exec, 1')
    k(f'buffer_store_dword v{vt}, v{vzero}, s[4:7], s{sflag} offen sc1')
    k('s_mov_b64 exec, -1')


def load_ffrags(k, dst, sbase, st1, st2, vl16):
    k(f's_add_u32 s{st1}, s{sbase}, 4096')
    k(f's_add_u32 s{st2}, s{sbase}, 8192')
    for mt in range(2):
        for f in range(4):
            k(f'buffer_load_dwordx4 {vr(dst + (mt * 6 + f) * 4, 4)}, v{vl16}, s[4:7], s{sbase if mt == 0 else st1} offen offset:{f * 1024} sc1')
        for sl in range(4):
            k(f'buffer_load_dwordx2 {vr(dst + (mt * 6 + 4) * 4 + 2 * sl, 2)}, v{vl16}, s[4:7], s{st2} offen offset:{sl * 1024 + mt * 8} sc1')


def emit_wo_stage(k, srd, m60, rowbytes, ntiles, ring):
    st = Stager(k, srd, 16, 17, 10, 11, 19, m60, 1280, rowbytes, 192, ring)
    st.issue_upto(0)
    for rho in range(12):
        b, pos = rho // 3, rho % 3
        f, h = (b, pos) if pos < 2 else (4 + (b >> 1), b & 1)
        st.wait_rows(16 * (rho + 1))
        for nt in range(ntiles):
            st.tread(ar((nt * 6 + f) * 4 + 2 * h, 2), 16 * rho, 32 * nt)
        if st.issued < st.n:
            k('s_waitcnt lgkmcnt(0)')
            st.issue_upto(16 * (rho + 1))
    k('s_waitcnt lgkmcnt(0)')


def emit_proj(k, isq):
    pfx = f'{NAME}_q' if isq else f'{NAME}_kv'
    if isq:
        k(f's_mov_b32 s9, s{S_HEAD}')
    else:
        k(f's_add_u32 s9, s{S_KIND}, 1')
        k('s_lshl_b32 s9, s9, 5')
        k(f's_add_u32 s9, s9, s{S_HEAD}')
    k('v_lshlrev_b32 v2, 4, v1')
    k('v_mov_b32 v7, 0')
    k(f's_mul_i32 s10, s{S_HEAD}, 384')
    k('s_mul_i32 s11, s3, 96')
    k('s_add_u32 s10, s10, s11')
    k('s_mul_i32 s11, s3, 30720')
    k('s_add_u32 s11, s11, 40960')
    stage_setup(k, 16, 17, 1, 12288, 96, 18, 8)
    k('v_add_u32 v17, s11, v17')
    k('s_mul_i32 s13, s3, 10240')
    k(f's_add_u32 s12, s13, {HF}')
    k('s_lshl_b32 s15, s3, 10')
    k('v_add_u32 v3, s15, v2')
    k('s_lshr_b32 s15, s3, 1')
    k('s_add_u32 s15, s15, 4')
    k('s_lshl_b32 s15, s15, 10')
    k('s_and_b32 s16, s3, 1')
    k('s_lshl_b32 s16, s16, 3')
    k('s_add_u32 s15, s15, s16')
    k('v_add_u32 v4, s15, v2')
    if not isq:
        k('s_lshr_b32 s14, s9, 5')
        k(f's_mul_i32 s14, s14, {QKVF_M}')
        k(f's_mul_i32 s15, s{S_HEAD}, 12288')
        k('s_add_u32 s14, s14, s15')
        k(f's_add_u32 s14, s14, {QKVF}')
        k('v_add_u32 v4, 4096, v3')
        k('v_add_u32 v9, 8192, v3')
        k(f's_lshl_b32 s25, s{S_KIND}, 12')
        k(f's_lshl_b32 s15, s{S_HEAD}, 7')
        k('s_add_u32 s25, s25, s15')
        k('s_lshl_b32 s15, s3, 2')
        k('s_add_u32 s25, s25, s15')
        k(f's_add_u32 s25, s25, s{S_FL}')

    def dma(sbuf):
        k(f's_add_u32 s17, s{sbuf}, s13')
        k('s_mov_b32 s18, s12')
        for i in range(10):
            if i % 4 == 0:
                if i:
                    k('s_add_u32 s17, s17, 4096')
                    k('s_add_u32 s18, s18, 4096')
                k('s_mov_b32 m0, s17')
            k(f'buffer_load_dwordx4 v2, s[4:7], s18 offen offset:{(i % 4) * 1024} lds')
        k('s_add_u32 s12, s12, 40960')

    k('s_mov_b32 s20, 0')
    k('s_mov_b32 s21, 40960')
    k('s_mov_b32 s22, 81920')
    if isq:
        for _ in range(OPT.get('qdelay', 2)):
            k('s_sleep 100')
    elif OPT.get('kdelay'):
        k(f's_cmp_lg_u32 s{S_KIND}, 0')
        k(f's_cbranch_scc1 {pfx}_go')
        k(f's_sleep {OPT["kdelay"]}')
        k.label(f'{pfx}_go')
    dma(20)
    st = Stager(k, S_WSRD, 16, 17, 10, 11, 19, M_60, 12288, 96, 640, 320)
    st.issue_upto(0)
    for t in range(20):
        st.wait_rows(32 * (t + 1))
        for i in range(3):
            for h in range(2):
                st.tread(ar((i * 20 + t) * 4 + 2 * h, 2), 32 * t + 4 * h, 32 * i)
        if st.issued < st.n:
            k('s_waitcnt lgkmcnt(0)')
            st.issue_upto(32 * (t + 1))
    k('s_waitcnt lgkmcnt(0)')
    k('s_barrier')
    dma(21)
    k('v_add_u32 v5, s20, v2')
    wstamp(k, 1)
    FR, ACC, OUT, PD = 16, [48, 72], 96, 3

    def rd(t, mt, vaddr):
        idx = t * 2 + mt
        k(f'ds_read_b128 {vr(FR + (idx % 8) * 4, 4)}, v{vaddr} offset:{mt * 20480 + (t % 20) * 1024}')

    for t in range(PD):
        rd(t, 0, 5)
        rd(t, 1, 5)
    k('s_mov_b32 s24, 0')

    def cvts(mt, acc):
        o = OUT + mt * 8
        a = lambda i, r: acc + (mt * 3 + i) * 4 + r
        for i in range(3):
            k(f'v_cvt_pk_bf16_f32 v{o + 2 * i}, v{a(i, 0)}, v{a(i, 1)}')
            k(f'v_cvt_pk_bf16_f32 v{o + 2 * i + 1}, v{a(i, 2)}, v{a(i, 3)}')
        return o

    def epilogue_part(mt, acc):
        a = lambda i, r: acc + (mt * 3 + i) * 4 + r
        for i in range(3):
            o = OUT + 4 * mt + 2 * i if i < 2 else OUT + 8 + 2 * mt
            k(f'v_cvt_pk_bf16_f32 v{o}, v{a(i, 0)}, v{a(i, 1)}')
            k(f'v_cvt_pk_bf16_f32 v{o + 1}, v{a(i, 2)}, v{a(i, 3)}')
        k(f'buffer_store_dwordx4 {vr(OUT + 4 * mt, 4)}, v{3 + mt}, s[4:7], s14 offen{"" if OPT.get("kvplain") else " sc1"}')
        if mt == 1:
            k(f'buffer_store_dwordx4 {vr(OUT + 8, 4)}, v9, s[4:7], s14 offen{"" if OPT.get("kvplain") else " sc1"}')
            k(f's_add_u32 s14, s14, {32 * 12288}')

    def dma1(i):
        if i % 4 == 0 and i:
            k('s_add_u32 s17, s17, 4096')
            k('s_add_u32 s18, s18, 4096')
        k('s_mov_b32 m0, s17')
        k(f'buffer_load_dwordx4 v2, s[4:7], s18 offen offset:{(i % 4) * 1024} lds')

    def seg_body(par, epi, hook=None, head=True):
        acc = ACC[par]
        pacc = ACC[1 - par]
        for t in range(20):
            k(f's_waitcnt lgkmcnt({2 * (PD - 1)})')
            for mt in range(2):
                fr = FR + ((t * 2 + mt) % 8) * 4
                for i in range(3):
                    d = acc + (mt * 3 + i) * 4
                    c = '0' if t == 0 else vr(d, 4)
                    k(f'v_mfma_f32_16x16x32_bf16 {vr(d, 4)}, {ar((i * 20 + t) * 4, 4)}, {vr(fr, 4)}, {c}')
                    if i == 0:
                        rd(t + PD, mt, 5 if t + PD < 20 else 6)
                    if i == 1 and t >= 15:
                        dma1((t - 15) * 2 + mt)
                if epi and t in (1, 3) and mt == 0:
                    epilogue_part((t - 1) // 2, pacc)
            if t == 14:
                k('s_waitcnt vmcnt(0)')
                k('s_barrier')
                k('v_add_u32 v6, s21, v2')
                if epi:
                    put_flag(k, 24, 25, 8, 7)
                if hook:
                    hook()
                k('s_add_u32 s17, s22, s13')
                k('s_mov_b32 s18, s12')
                k('s_add_u32 s12, s12, 40960')
        k('s_mov_b32 s23, s20')
        k('s_mov_b32 s20, s21')
        k('s_mov_b32 s21, s22')
        k('s_mov_b32 s22, s23')
        k('v_mov_b32 v5, v6')
        k('s_add_u32 s24, s24, 1')

    if not isq:
        seg_body(0, False)
        epilogue_part(0, ACC[0])
        epilogue_part(1, ACC[0])
        k('s_waitcnt vmcnt(0)')
        put_flag(k, 24, 25, 8, 7)
        wstamp(k, 8)
        seg_body(0, False)
        k.label(f'{pfx}_loop')
        seg_body(1, True)
        seg_body(0, True)
        k('s_cmp_lt_u32 s24, 64')
        k(f's_cbranch_scc1 {pfx}_loop')
        epilogue_part(0, ACC[0])
        epilogue_part(1, ACC[0])
        k('s_waitcnt vmcnt(0) lgkmcnt(0)')
        put_flag(k, 24, 25, 8, 7)
        k(f's_cmp_lg_u32 s{S_LAYER}, 0')
        k(f's_cbranch_scc1 {NAME}_tout')
        k(f's_lshl_b32 s73, s{S_KIND}, 5')
        k(f's_add_u32 s73, s73, s{S_HEAD}')
        k('s_lshl_b32 s73, s73, 2')
        k('s_add_u32 s73, s73, s3')
        k_prep.emit_bjobs(k, NAME, 73, 256)
        k(f's_branch {NAME}_tout')
        return
    k('v_and_b32 v9, 15, v1')
    k('v_lshrrev_b32 v10, 4, v1')
    k('v_and_b32 v11, 7, v1')
    k('v_lshlrev_b32 v11, 4, v11')
    k('v_lshl_add_u32 v11, v10, 7, v11')
    k('v_lshrrev_b32 v8, 1, v11')
    k(f'v_add_u32 v3, {L_Q}, v3')
    k(f'v_add_u32 v4, {L_Q}, v4')
    k('s_mul_i32 s26, s3, 6144')
    k(f's_add_u32 s26, s26, {L_Q}')
    k('v_add_u32 v12, s26, v2')
    k(f'v_mov_b32 v13, {f32(NEG)}')
    k('v_lshlrev_b32 v14, 2, v10')
    for r in range(4):
        k(f'v_add_u32 v15, {r}, v14')
        k(f'v_cmp_le_u32 s[{32 + 2 * r}:{33 + 2 * r}], v15, v9')
    k('s_mov_b32 s40, -1')
    k('s_mov_b32 s41, 0')
    k(f's_mov_b32 s42, {f32(SCALE_L2E)}')
    k('s_lshr_b32 s31, s3, 1')
    k('s_lshl_b32 s31, s31, 5')
    k(f's_add_u32 s31, s31, s{S_HEAD}')
    k('s_mul_i32 s26, s31, 12288')
    k(f's_add_u32 s26, s26, {QKVF + QKVF_M}')
    k('s_mul_i32 s27, s31, 3072')
    k(f's_add_u32 s27, s27, {KM}')
    k('s_mul_i32 s28, s3, 40960')
    k(f's_add_u32 s28, s28, {PP}')
    k(f's_lshl_b32 s29, s{S_HEAD}, 10')
    k('v_add_u32 v14, s29, v2')
    k(f's_lshr_b32 s29, s{S_HEAD}, 2')
    k('s_add_u32 s29, s29, 32')
    k('s_lshl_b32 s29, s29, 10')
    k(f's_and_b32 s31, s{S_HEAD}, 3')
    k('s_lshl_b32 s31, s31, 8')
    k('s_add_u32 s29, s29, s31')
    k('v_lshlrev_b32 v15, 3, v10')
    k('v_lshl_add_u32 v15, v9, 4, v15')
    k('v_add_u32 v15, s29, v15')
    k(f's_lshl_b32 s48, s{S_HEAD}, 7')
    k(f's_add_u32 s48, s48, s{S_FL}')
    k(f's_add_u32 s49, s48, {FL_KM}')
    k('s_lshl_b32 s50, s3, 2')
    k('s_add_u32 s50, s50, s48')
    k(f's_add_u32 s50, s50, {FL_P}')
    k('s_mov_b32 s51, 0')
    k('s_mov_b32 s52, 0')
    QF, KF, MF, SD = 112, 136, 184, 208
    k('s_lshr_b32 s60, s3, 1')
    k('s_add_u32 s60, s60, 1')
    k('s_mov_b32 s62, 0')

    def qwrite(buf):
        for mt in range(2):
            o = cvts(mt, ACC[0])
            k(f'ds_write_b128 v3, {vr(o, 4)} offset:{buf * 12288 + mt * 6144}')
            k(f'ds_write_b64 v4, {vr(o + 4, 2)} offset:{buf * 12288 + mt * 6144}')

    k('s_mov_b32 s61, 0')

    def kmloads():
        for f in range(4):
            k(f'buffer_load_dwordx4 {vr(MF + f * 4, 4)}, v11, s[4:7], s27 offen offset:{f * 512} sc1')
        for sl in range(4):
            k(f'buffer_load_dwordx2 {vr(MF + 16 + 2 * sl, 2)}, v8, s[4:7], s27 offen offset:{2048 + sl * 256} sc1')

    def hook_a():
        lab = k.newlabel('fp')
        k('s_cmp_eq_u32 s61, 0')
        k(f's_cbranch_scc1 {lab}')
        put_flag(k, 61, 50, 220, 7)
        k('s_mov_b32 s61, 0')
        k.label(lab)
        k('buffer_load_dwordx4 v[72:75], v7, s[4:7], s49 offen sc1')

    def hook_b():
        k('v_min3_u32 v72, v72, v73, v74')
        k('v_min_u32 v72, v72, v75')
        k('v_readfirstlane_b32 s63, v72')
        k('s_max_u32 s52, s52, s63')
        poll_min(k, [(7, 48, 4)], 60, 220, srdy=51)
        load_ffrags(k, KF, 26, 53, 54, 2)
        lab = k.newlabel('kq')
        k('s_cmp_ge_u32 s52, s60')
        k('s_cselect_b32 s63, 1, 0')
        k(f's_cbranch_scc0 {lab}')
        kmloads()
        k.label(lab)

    QN = 232

    def gpair(ha, hb, dst):
        seg_body(0, False, hook=ha)
        qwrite(0)
        seg_body(0, False, hook=hb)
        qwrite(1)
        k('s_waitcnt lgkmcnt(0)')
        k('s_barrier')
        for f in range(6):
            k(f'ds_read_b128 {vr(dst + 4 * f, 4)}, v12 offset:{f * 1024}')

    gpair(None, None, QN)
    k.label(f'{pfx}_loop')
    k('s_waitcnt lgkmcnt(0)')
    for r in range(24):
        k(f'v_mov_b32 v{QF + r}, v{QN + r}')
    k('s_cmp_eq_u32 s62, 31')
    k(f's_cbranch_scc1 {pfx}_last')
    gpair(hook_a, hook_b, QN)
    k(f's_branch {pfx}_sc')
    k.label(f'{pfx}_last')
    k('s_waitcnt vmcnt(0)')
    hook_a()
    k('s_waitcnt vmcnt(0)')
    hook_b()
    k.label(f'{pfx}_sc')
    k('s_cmp_eq_u32 s63, 1')
    k(f's_cbranch_scc1 {pfx}_havekm')
    poll_min(k, [(7, 49, 4)], 60, 220, srdy=52, slp=1)
    kmloads()
    k.label(f'{pfx}_havekm')
    k('s_waitcnt vmcnt(8)')
    k('s_cmp_eq_u32 s62, 31')
    k(f's_cbranch_scc0 {pfx}_w8')
    k('s_waitcnt vmcnt(0)')
    k.label(f'{pfx}_w8')
    for f in range(6):
        for n in range(2):
            c = '0' if f == 0 else vr(SD + 4 * n, 4)
            k(f'v_mfma_f32_16x16x32_bf16 {vr(SD + 4 * n, 4)}, {vr(KF + 24 * n + 4 * f, 4)}, {vr(QF + 4 * f, 4)}, {c}')
    k('s_waitcnt vmcnt(0)')
    for f in range(6):
        c = '0' if f == 0 else vr(SD + 8, 4)
        k(f'v_mfma_f32_16x16x32_bf16 {vr(SD + 8, 4)}, {vr(MF + 4 * f, 4)}, {vr(QF + 4 * f, 4)}, {c}')
    k('s_bitcmp0_b32 s3, 0')
    for r in range(4):
        k(f's_cselect_b64 s[56:57], s[{32 + 2 * r}:{33 + 2 * r}], -1')
        k(f's_cselect_b64 s[58:59], 0, s[{32 + 2 * r}:{33 + 2 * r}]')
        k(f'v_cndmask_b32 v{SD + r}, v13, v{SD + r}, s[56:57]')
        k(f'v_cndmask_b32 v{SD + 4 + r}, v13, v{SD + 4 + r}, s[58:59]')
        k(f'v_cndmask_b32 v{SD + 8 + r}, v13, v{SD + 8 + r}, s[40:41]')
    vals = list(range(SD, SD + 12))
    mx, tmp = 220, 221
    k(f'v_max3_f32 v{mx}, v{vals[0]}, v{vals[1]}, v{vals[2]}')
    for n in range(3, 11, 2):
        k(f'v_max3_f32 v{mx}, v{mx}, v{vals[n]}, v{vals[n + 1]}')
    k(f'v_max_f32 v{mx}, v{mx}, v{vals[11]}')
    allreduce_g(k, mx, tmp, 'v_max_f32')
    k(f'v_mul_f32 v{mx}, s42, v{mx}')
    for v in vals:
        k(f'v_fma_f32 v{v}, v{v}, s42, -v{mx}')
    for v in vals:
        k(f'v_exp_f32 v{v}, v{v}')
    for r in range(4):
        k(f'v_cndmask_b32 v{SD + 8 + r}, 0, v{SD + 8 + r}, s[40:41]')
    k(f'v_add_f32 v{mx}, v{vals[0]}, v{vals[1]}')
    for v in vals[2:]:
        k(f'v_add_f32 v{mx}, v{mx}, v{v}')
    allreduce_g(k, mx, tmp)
    k(f'v_rcp_f32 v{mx}, v{mx}')
    for v in vals:
        k(f'v_mul_f32 v{v}, v{v}, v{mx}')
    o = 224
    for p in range(6):
        k(f'v_cvt_pk_bf16_f32 v{o + p}, v{SD + 2 * p}, v{SD + 2 * p + 1}')
    k(f'buffer_store_dwordx4 {vr(o, 4)}, v14, s[4:7], s28 offen sc1')
    k('s_mov_b64 exec, s[40:41]')
    k(f'buffer_store_dwordx2 {vr(o + 4, 2)}, v15, s[4:7], s28 offen sc1')
    k('s_mov_b64 exec, -1')
    k(f's_add_u32 s26, s26, {64 * 12288}')
    k(f's_add_u32 s27, s27, {64 * 3072}')
    k('s_add_u32 s28, s28, 163840')
    k('s_add_u32 s60, s60, 2')
    k('s_add_u32 s62, s62, 1')
    k('s_mov_b32 s61, s62')
    k('s_cmp_lt_u32 s62, 32')
    k('s_cselect_b32 s63, s63, 0')
    k('s_cmp_eq_u32 s63, 1')
    k(f's_cbranch_scc1 {pfx}_loop')
    k('s_waitcnt vmcnt(0)')
    put_flag(k, 62, 50, 220, 7)
    k('s_mov_b32 s61, 0')
    k('s_cmp_lt_u32 s62, 32')
    k(f's_cbranch_scc1 {pfx}_loop')
    wstamp(k, 3)
    k('s_endpgm')


def emit_u(k):
    pfx = f'{NAME}_u'
    k('v_lshlrev_b32 v2, 4, v1')
    k('v_mov_b32 v7, 0')
    k(f's_mul_i32 s10, s{S_HEAD}, {192 * 1280}')
    k('s_mul_i32 s11, s3, 320')
    k('s_add_u32 s10, s10, s11')
    k('s_mul_i32 s11, s3, 30720')
    stage_setup(k, 16, 17, 1, 1280, 320, 18, 4)
    k('v_add_u32 v17, s11, v17')
    emit_wo_stage(k, S_WSRD, M_60, 320, 10, 96)
    k(f's_mul_i32 s12, s{S_HEAD}, 12288')
    k(f's_add_u32 s12, s12, {QKVF + 2 * QKVF_M}')
    k(f's_mul_i32 s14, s{S_HEAD}, 40960')
    k('s_mul_i32 s13, s3, 10240')
    k('s_add_u32 s14, s14, s13')
    k(f's_add_u32 s14, s14, {UU}')
    k('v_and_b32 v3, 15, v1')
    k('v_lshlrev_b32 v3, 6, v3')
    k('v_lshrrev_b32 v4, 4, v1')
    k('v_lshl_add_u32 v3, v4, 4, v3')
    k(f's_lshl_b32 s20, s{S_HEAD}, 7')
    k(f's_add_u32 s20, s20, s{S_FL}')
    k('s_lshl_b32 s21, s3, 2')
    k('s_add_u32 s21, s21, s20')
    k(f's_add_u32 s21, s21, {FL_U}')
    k(f's_add_u32 s20, s20, {FL_V}')
    k('s_mov_b32 s22, 0')
    k('s_mov_b32 s23, 1')
    k('s_mov_b32 s24, 0')
    AF, ACC, OUT = [16, 64], [112, 120], [128, 132]

    def load_a(par):
        poll_min(k, [(7, 20, 4)], 23, 8, srdy=22, slp=3)
        load_ffrags(k, AF[par], 12, 15, 17, 2)
        k(f's_add_u32 s12, s12, {32 * 12288}')
        k('s_add_u32 s23, s23, 1')
        k('s_min_u32 s23, s23, 64')

    load_a(0)
    k('s_mov_b32 s16, s14')
    k('s_waitcnt vmcnt(0)')
    wstamp(k, 1)

    def epi(p, last_in_seg):
        a, o = ACC[p], OUT[p]
        for q in range(4):
            k(f'v_cvt_pk_bf16_f32 v{o + q}, v{a + 2 * q}, v{a + 2 * q + 1}')
        k(f'buffer_store_dwordx4 {vr(o, 4)}, v3, s[4:7], s16 offen{"" if OPT.get("uplain") else " sc1"}')
        if last_in_seg:
            k(f's_add_u32 s14, s14, {32 * 40960}')
            k('s_mov_b32 s16, s14')
        else:
            k('s_add_u32 s16, s16, 1024')

    def seg_body(par, first):
        k('s_waitcnt vmcnt(0)' if first else 's_waitcnt vmcnt(9)')
        for nt in range(10):
            p = nt % 2
            for f in range(6):
                for mt in range(2):
                    d = ACC[p] + mt * 4
                    c = '0' if f == 0 else vr(d, 4)
                    k(f'v_mfma_f32_16x16x32_bf16 {vr(d, 4)}, {vr(AF[par] + (mt * 6 + f) * 4, 4)}, {ar((nt * 6 + f) * 4, 4)}, {c}')
                if f == 3 and not (first and nt == 0):
                    epi(1 - p, nt == 0)
                if f == 5 and nt == 0:
                    load_a(1 - par)
            if nt == 4 and not first:
                k('s_waitcnt vmcnt(20)')
                k('s_add_u32 s24, s24, 1')
                put_flag(k, 24, 21, 8, 7)

    seg_body(0, True)
    epi(1, True)
    k('s_waitcnt vmcnt(0)')
    k('s_add_u32 s24, s24, 1')
    put_flag(k, 24, 21, 8, 7)
    wstamp(k, 8)
    seg_body(1, True)
    k.label(f'{pfx}_loop')
    seg_body(0, False)
    seg_body(1, False)
    k('s_cmp_lt_u32 s24, 63')
    k(f's_cbranch_scc1 {pfx}_loop')
    epi(1, True)
    k('s_waitcnt vmcnt(0)')
    k('s_add_u32 s24, s24, 1')
    put_flag(k, 24, 21, 8, 7)
    k(f's_branch {NAME}_tout')


def emit_tout(k):
    pfx = f'{NAME}_tout'
    k.label(pfx)
    k('s_barrier')
    wstamp(k, 2)
    if OPT.get('gemmonly') or OPT.get('notout'):
        k('s_endpgm')
    k('v_lshlrev_b32 v2, 4, v1')
    k('v_and_b32 v3, 15, v1')
    k('v_lshrrev_b32 v4, 4, v1')
    k('v_lshrrev_b32 v5, 2, v3')
    k('v_lshlrev_b32 v5, 3, v5')
    k('v_and_b32 v6, 3, v3')
    k('v_add_u32 v5, v5, v6')
    k('v_lshlrev_b32 v5, 6, v5')
    k('v_lshl_add_u32 v5, v4, 4, v5')
    k('v_add_u32 v6, 40960, v2')
    k('v_lshlrev_b32 v8, 2, v1')
    k('v_and_b32 v9, 31, v1')
    k('v_lshlrev_b32 v9, 2, v9')
    k('v_mul_u32_u24 v10, 1280, v3')
    k('v_lshl_add_u32 v10, v4, 4, v10')
    k('s_lshr_b32 s9, s3, 1')
    k(f's_mul_i32 s9, s9, {16 * 1280}')
    k('s_and_b32 s10, s3, 1')
    k('s_lshl_b32 s10, s10, 3')
    k('s_add_u32 s9, s9, s10')
    k('v_add_u32 v10, s9, v10')
    k('s_lshr_b32 s9, s3, 1')
    k('s_mul_i32 s9, s9, 20480')
    k('s_add_u32 s9, s9, s10')
    k('v_add_u32 v197, s9, v2')
    k(f's_cmp_eq_u32 s{S_LAYER}, 0')
    k('s_cselect_b64 s[36:37], -1, 0')
    k('v_cndmask_b32 v10, v197, v10, s[36:37]')
    k('s_lshl_b32 s9, s3, 12')
    k('v_add_u32 v11, s9, v2')
    k('s_lshl_b32 s9, s3, 10')
    k('v_add_u32 v12, s9, v2')
    k(f's_add_u32 s20, s{S_FL}, {FL_P}')
    k(f's_add_u32 s15, s{S_FL}, {FL_U}')
    k(f's_add_u32 s16, s{S_FL}, {FL_KM + 16}')
    k('v_and_b32 v9, 31, v1')
    k('v_lshlrev_b32 v9, 7, v9')
    k('s_mov_b32 s27, 0')
    k(f's_lshl_b32 s32, s{S_HEAD}, 7')
    k(f's_add_u32 s32, s32, s{S_FL}')
    k(f's_add_u32 s32, s32, {FL_KM}')
    k('s_mov_b32 s33, 0')
    k('s_mov_b32 s25, 0')
    k('s_mov_b32 s26, 0')
    k('s_mov_b32 s31, 0')
    k('v_mov_b32 v13, 1')
    k('v_mov_b32 v7, 0')
    k('v_mov_b32 v194, 32768')
    AFR, PFR, ACC = 16, 96, 176

    def next_job_issue():
        lab = k.newlabel('nj')
        k('s_cmp_lg_u32 s3, 0')
        k(f's_cbranch_scc1 {lab}')
        k('v_mov_b32 v195, 1')
        k('s_mov_b64 exec, 1')
        k(f'buffer_atomic_add v195, v7, s[{S_DBG}:{S_DBG + 3}], 0 offen offset:128 sc0 sc1')
        k('s_mov_b64 exec, -1')
        k.label(lab)

    def next_job_publish():
        lab = k.newlabel('np')
        k('s_cmp_lg_u32 s3, 0')
        k(f's_cbranch_scc1 {lab}')
        k('s_mov_b64 exec, 1')
        k('ds_write_b32 v194, v195')
        k('s_mov_b64 exec, -1')
        k.label(lab)

    def next_job_read():
        k('ds_read_b32 v196, v194')
        k('v_xor_b32 v194, 4, v194')

    next_job_issue()
    k('s_waitcnt vmcnt(0)')
    next_job_publish()
    k('s_waitcnt lgkmcnt(0)')
    k('s_barrier')
    next_job_read()
    k('s_waitcnt lgkmcnt(0)')
    k.label(f'{pfx}_loop')
    k('v_readfirstlane_b32 s8, v196')
    k('s_cmp_ge_u32 s8, 1280')
    k(f's_cbranch_scc1 {pfx}_done')
    next_job_issue()
    sdivmod(k, 12, 13, 8, 20)
    k('s_add_u32 s14, s12, 1')
    k('s_lshr_b32 s34, s12, 1')
    k('s_add_u32 s34, s34, 1')
    k('s_add_u32 s28, s12, 2')
    k('s_cmp_ge_u32 s12, 62')
    k('s_cselect_b32 s29, 64, 0')
    k('s_cselect_b32 s28, 0, s28')
    k('s_lshl_b32 s17, s13, 11')
    k('s_lshl_b32 s18, s12, 5')
    k('s_mul_i32 s19, s3, 10')
    k('s_add_u32 s18, s18, s19')
    k('s_mul_i32 s18, s18, 40960')
    k('s_add_u32 s18, s18, s17')
    k(f's_add_u32 s18, s18, {UU}')
    k(f's_mul_i32 s21, s12, {8 * 40960}')
    k('s_add_u32 s21, s21, s17')
    k(f's_add_u32 s21, s21, {YM}')
    k('s_mul_i32 s22, s12, 81920')
    k('s_lshl_b32 s19, s19, 10')
    k('s_add_u32 s22, s22, s19')
    k(f's_add_u32 s22, s22, {PP}')
    k(f's_mul_i32 s23, s12, {32 * 1280}')
    k('s_lshl_b32 s19, s13, 6')
    k('s_add_u32 s23, s23, s19')
    k('s_mul_i32 s35, s12, 40')
    k('s_add_u32 s35, s35, s13')
    k('s_lshl_b32 s35, s35, 10')
    k(f's_cmp_eq_u32 s{S_LAYER}, 0')
    k('s_cselect_b32 s23, s23, s35')
    k(f'buffer_load_dwordx2 v[14:15], v10, s[{S_XS}:{S_XS + 3}], s23 offen')
    poll_min(k, [(9, 15, 4)], 14, 200, srdy=25, xlane=True, slp=16)

    def aload(i):
        for h in range(2):
            k(f'buffer_load_dwordx4 {vr(AFR + (i * 2 + h) * 4, 4)}, v5, s[4:7], s18 offen offset:{h * 256} sc1')
        k('s_add_u32 s18, s18, 40960')
    aload(0)
    aload(1)
    k('s_cmp_eq_u32 s3, 3')
    k(f's_cbranch_scc1 {pfx}_w3a')
    for i in range(2, 10):
        aload(i)
    poll_min(k, [(9, 20, 4)], 34, 200, srdy=26, xlane=True, slp=OPT.get('tsl', 4))
    k(f's_branch {pfx}_pl')
    k.label(f'{pfx}_w3a')
    poll_min(k, [(7, 32, 1)], 28, 200, srdy=33, slp=8)
    poll_min(k, [(9, 16, 4)], 29, 200, srdy=27, xlane=True, slp=4)
    k('s_mov_b32 s18, s21')
    for i in range(2, 10):
        aload(i)
    poll_min(k, [(9, 20, 4)], 34, 200, srdy=26, xlane=True, slp=OPT.get('tsl', 4))
    k.label(f'{pfx}_pl')
    k('s_add_u32 s19, s22, 4096')
    k('s_add_u32 s24, s22, 8192')
    for i in range(10):
        so = ('s22', 's19', 's24')[i // 4]
        for mt in range(2):
            k(f'buffer_load_dwordx4 {vr(PFR + (i * 2 + mt) * 4, 4)}, v{2 if mt == 0 else 6}, s[4:7], {so} offen offset:{(i % 4) * 1024} sc1')
    for i in range(10):
        k(f's_waitcnt vmcnt({2 * (9 - i)})')
        for h in range(2):
            for mt in range(2):
                d = ACC + (mt * 2 + h) * 4
                c = '0' if i == 0 else vr(d, 4)
                k(f'v_mfma_f32_16x16x32_bf16 {vr(d, 4)}, {vr(AFR + (i * 2 + h) * 4, 4)}, {vr(PFR + (i * 2 + mt) * 4, 4)}, {c}')
    k('v_add_u32 v192, s31, v11')
    k('v_add_u32 v193, s31, v12')
    for n in range(4):
        k(f'ds_write_b128 v192, {vr(ACC + 4 * n, 4)} offset:{n * 1024}')
    next_job_publish()
    k('s_waitcnt lgkmcnt(0)')
    k('s_barrier')
    next_job_read()
    for n in range(4):
        k(f'ds_read_b128 {vr(AFR + 4 * n, 4)}, v193 offset:{n * 4096}')
    k('s_mov_b32 s19, 0xffff0000')
    k('v_lshlrev_b32 v32, 16, v14')
    k('v_and_b32 v33, s19, v14')
    k('v_lshlrev_b32 v34, 16, v15')
    k('v_and_b32 v35, s19, v15')
    k('s_waitcnt lgkmcnt(0)')
    for n in range(4):
        k(f'v_pk_add_f32 v[32:33], v[32:33], {vr(AFR + 4 * n, 2)}')
        k(f'v_pk_add_f32 v[34:35], v[34:35], {vr(AFR + 4 * n + 2, 2)}')
    k('v_cvt_pk_bf16_f32 v32, v32, v33')
    k('v_cvt_pk_bf16_f32 v33, v34, v35')
    k(f's_add_u32 s35, s35, {X1}')
    k('buffer_store_dwordx2 v[32:33], v197, s[4:7], s35 offen')
    k('s_xor_b32 s31, s31, 16384')
    if STAMPS:
        for jj, thr in enumerate((320, 640, 960, 1184)):
            lab = k.newlabel('tj')
            k(f's_sub_u32 s19, s8, {thr}')
            k('s_cmp_lt_u32 s19, 20')
            k(f's_cbranch_scc0 {lab}')
            wstamp(k, 4 + jj)
            k.label(lab)
    k(f's_branch {pfx}_loop')
    k.label(f'{pfx}_done')
    wstamp(k, 3)
    k('s_endpgm')


def make_mega(stamps=False):
    global STAMPS
    STAMPS = stamps
    k = Kernel('mega0_kernel', vgpr=256, agpr=256)
    k(f's_mov_b32 s{S_LAYER}, 0')
    k.label(f'{NAME}_common')
    srd_load(k, 4, 'ws')
    srd_load(k, S_DBG, 'dbg')
    srd_load(k, S_XS, 'x')
    k('s_load_dwordx8 s[8:15], s[0:1], 16')
    for r in (S_WSRD, S_WSRD2):
        k(f's_mov_b32 s{r + 2}, {hex(640 * 12288)}')
        k(f's_mov_b32 s{r + 3}, 0x20000')
    k(f's_mov_b32 s{M_60}, -1')
    k(f's_mov_b32 s{M_60 + 1}, 0x0fffffff')
    wave_lane(k, 3, 1)
    k(f's_mov_b32 s{S_WG}, s2')
    k('s_cmp_ge_u32 s2, 256')
    k(f's_cbranch_scc1 {NAME}_end')
    k(f's_mul_i32 s{S_FL}, s{S_LAYER}, {FL_SZ}')
    k(f's_add_u32 s{S_FL}, s{S_FL}, {FL}')
    k(f's_and_b32 s{S_PX}, s2, 7')
    k('s_waitcnt lgkmcnt(0)')
    k(f's_add_u32 s16, s4, {X1}')
    k('s_addc_u32 s17, s5, 0')
    k(f's_cmp_eq_u32 s{S_LAYER}, 0')
    k(f's_cselect_b32 s{S_XS}, s{S_XS}, s16')
    k(f's_cselect_b32 s{S_XS + 1}, s{S_XS + 1}, s17')
    k(f's_lshr_b32 s{S_KIND}, s2, 6')
    k(f's_mov_b64 s[{S_WSRD}:{S_WSRD + 1}], s[8:9]')
    k(f's_mov_b64 s[{S_WSRD2}:{S_WSRD2 + 1}], s[10:11]')
    k(f's_cmp_lt_u32 s{S_PX}, 4')
    k(f's_cselect_b32 s16, 2, s{S_KIND}')
    for kind, src in ((0, 10), (1, 12), (3, 14)):
        k(f's_cmp_eq_u32 s16, {kind}')
        k(f's_cselect_b64 s[{S_WSRD}:{S_WSRD + 1}], s[{src}:{src + 1}], s[{S_WSRD}:{S_WSRD + 1}]')
    wstamp(k, 0)
    k(f's_cmp_lt_u32 s{S_PX}, 4')
    k(f's_cbranch_scc1 {NAME}_rec')
    k(f's_sub_u32 s8, s{S_PX}, 4')
    k('s_lshl_b32 s8, s8, 3')
    k('s_bfe_u32 s9, s2, 0x30003')
    k(f's_add_u32 s{S_HEAD}, s8, s9')
    k(f's_cmp_eq_u32 s{S_KIND}, 2')
    k(f's_cbranch_scc1 {NAME}_qrole')
    k(f's_cmp_eq_u32 s{S_KIND}, 3')
    k(f's_cbranch_scc1 {NAME}_urole')
    emit_proj(k, False)
    k.label(f'{NAME}_urole')
    emit_u(k)
    emit_tout(k)
    k.label(f'{NAME}_qrole')
    if OPT.get('gemmonly') or OPT.get('noq'):
        k('s_endpgm')
    emit_proj(k, True)
    k.label(f'{NAME}_rec')
    if OPT.get('rdelay'):
        k(f's_sleep {OPT["rdelay"]}')
    if OPT.get('gemmonly'):
        k('s_endpgm')
    k_rec.emit_rec(k, NAME, stamps=stamps)
    k.label(f'{NAME}_fail')
    k('s_mov_b64 exec, 1')
    k(f'v_mov_b32 v24, s{S_WG}')
    k('v_add_u32 v24, 0x1000, v24')
    k('v_mov_b32 v25, 64')
    k(f'buffer_store_dword v24, v25, s[{S_DBG}:{S_DBG + 3}], 0 offen')
    k.label(f'{NAME}_end')
    k('s_endpgm')
    k1 = Kernel('mega1_kernel', vgpr=256, agpr=256)
    k1(f's_mov_b32 s{S_LAYER}, 1')
    k1(f's_mov_b32 s99, 0')
    k1(f's_branch {NAME}_common')
    return k, k1
```

```python
from gen_common import *
from k_rec import OPT

N_LN = 512
N_INIT = 8
N_HB = 64
N_FILL = 44
J_LN = 0
J_INIT = J_LN + N_LN
J_HB = J_INIT + N_INIT
J_FILL = J_HB + N_HB
J_END = J_FILL + N_FILL
J_FOLD, J_PACKV, J_PACKO2, J_BEND = 0, 320, 420, 520


def emit_pack(k, srd, dstmode=0):
    k('v_lshlrev_b32 v2, 2, v1')
    if dstmode == 0:
        k('v_lshrrev_b32 v3, 3, v1')
        k('v_mul_lo_u32 v3, v3, s25')
        k('v_and_b32 v4, 7, v1')
        k('v_lshl_add_u32 v3, v4, 5, v3')
    elif dstmode == 1:
        k('v_lshrrev_b32 v3, 3, v1')
        k('v_add_u32 v3, s25, v3')
        k('v_mul_u32_u24 v4, 205, v3')
        k('v_lshrrev_b32 v4, 10, v4')
        k('v_mul_u32_u24 v5, 5, v4')
        k('v_sub_u32 v3, v3, v5')
        k('v_lshlrev_b32 v3, 10, v3')
        k('v_mul_u32_u24 v4, 307200, v4')
        k('v_add_u32 v3, v3, v4')
        k('v_and_b32 v4, 7, v1')
        k('v_lshl_add_u32 v3, v4, 5, v3')
    else:
        k('v_lshrrev_b32 v3, 4, v1')
        k('v_lshlrev_b32 v3, 1, v3')
        k('v_bfe_u32 v4, v1, 1, 1')
        k('v_add_u32 v3, v3, v4')
        k('v_mul_u32_u24 v3, 20480, v3')
        k('v_bfe_u32 v4, v1, 2, 2')
        k('v_lshl_add_u32 v3, v4, 6, v3')
        k('v_and_b32 v4, 1, v1')
        k('v_lshl_add_u32 v3, v4, 5, v3')
    k('s_mov_b32 s26, 0x05040100')
    k('s_mov_b32 s27, 0x07060302')
    for g in range(4):
        k('s_mov_b32 s28, s20')
        for j in range(8):
            if j == 4:
                k('s_add_u32 s28, s20, s22')
            k(f'buffer_load_dword v{8 + g * 8 + j}, v2, {sr(srd, 4)}, s28 offen')
            if j not in (3, 7):
                k('s_add_u32 s28, s28, s23')
        if g < 3:
            k('s_add_u32 s20, s20, s21')
    for g in range(4):
        k(f's_waitcnt vmcnt({24 - g * 8 + 2 * g})')
        b = 8 + g * 8
        o = 40 + g * 8
        for p in range(4):
            k(f'v_perm_b32 v{o + p}, v{b + 2 * p + 1}, v{b + 2 * p}, s26')
            k(f'v_perm_b32 v{o + 4 + p}, v{b + 2 * p + 1}, v{b + 2 * p}, s27')
        k(f'buffer_store_dwordx4 {vr(o, 4)}, v3, s[4:7], s24 offen offset:{g * 256}')
        k(f'buffer_store_dwordx4 {vr(o + 4, 4)}, v3, s[4:7], s24 offen offset:{g * 256 + 16}')


def emit_ln4(k):
    k('v_and_b32 v2, 15, v1')
    k('v_lshrrev_b32 v3, 4, v1')
    k('v_mul_u32_u24 v4, 1280, v3')
    k('v_lshl_add_u32 v4, v2, 4, v4')
    k(f's_mul_i32 s20, s2, {4 * 1280}')
    for i in range(5):
        k(f'buffer_load_dwordx4 {vr(8 + 4 * i, 4)}, v4, s[36:39], s20 offen offset:{i * 256}')
    k('v_lshrrev_b32 v5, 2, v2')
    k('v_lshlrev_b32 v5, 10, v5')
    k('v_and_b32 v6, 3, v2')
    k('v_lshl_add_u32 v5, v6, 8, v5')
    k('v_lshl_add_u32 v5, v3, 4, v5')
    k('s_lshr_b32 s21, s2, 2')
    k('s_mul_i32 s21, s21, 20480')
    k('s_and_b32 s22, s2, 3')
    k('s_lshl_b32 s22, s22, 6')
    k('s_add_u32 s21, s21, s22')
    k(f's_add_u32 s21, s21, {HF}')
    k('s_mov_b32 s30, 0xffff0000')
    k('s_waitcnt vmcnt(0)')
    F = 32

    def rowsum(v):
        for n in (8, 4, 2, 1):
            k(f'v_add_f32_dpp v{v}, v{v}, v{v} row_ror:{n} row_mask:0xf bank_mask:0xf')
    for i in range(20):
        k(f'v_lshlrev_b32 v{F + 2 * i}, 16, v{8 + i}')
        k(f'v_and_b32 v{F + 2 * i + 1}, s30, v{8 + i}')
        if i == 1:
            k(f'v_pk_add_f32 v[6:7], {vr(F, 2)}, {vr(F + 2, 2)}')
        elif i > 1:
            k(f'v_pk_add_f32 v[6:7], v[6:7], {vr(F + 2 * i, 2)}')
    k('v_add_f32 v6, v6, v7')
    rowsum(6)
    k(f'v_mul_f32 v6, {f32(-1.0 / 640)}, v6')
    k('v_mov_b32 v7, v6')
    for i in range(20):
        k(f'v_pk_add_f32 {vr(F + 2 * i, 2)}, {vr(F + 2 * i, 2)}, v[6:7]')
        if i == 0:
            k(f'v_pk_mul_f32 v[28:29], {vr(F, 2)}, {vr(F, 2)}')
        else:
            k(f'v_pk_fma_f32 v[28:29], {vr(F + 2 * i, 2)}, {vr(F + 2 * i, 2)}, v[28:29]')
    k('v_add_f32 v28, v28, v29')
    rowsum(28)
    k(f'v_mov_b32 v6, {f32(1e-5)}')
    k(f'v_fmac_f32 v6, {f32(1.0 / 640)}, v28')
    k('v_rsq_f32 v6, v6')
    k('v_mov_b32 v7, v6')
    for i in range(20):
        k(f'v_pk_mul_f32 {vr(F + 2 * i, 2)}, {vr(F + 2 * i, 2)}, v[6:7]')
        k(f'v_cvt_pk_bf16_f32 v{8 + i}, v{F + 2 * i}, v{F + 2 * i + 1}')
        if i % 4 == 3:
            k(f'buffer_store_dwordx4 {vr(8 + i - 3, 4)}, v5, s[4:7], s21 offen')
            k('s_add_u32 s21, s21, 4096')


def emit_fold(k):
    k('s_and_b32 s72, s2, 3')
    k('s_lshr_b32 s2, s2, 2')
    sdivmod(k, 64, 65, 2, 40)
    sdivmod(k, 66, 67, 65, 5)
    k('v_and_b32 v2, 15, v1')
    k('v_lshrrev_b32 v3, 4, v1')
    k('v_lshrrev_b32 v4, 2, v2')
    k('v_and_b32 v5, 3, v2')
    k('v_lshlrev_b32 v6, 3, v3')
    k('v_mul_u32_u24 v7, 20, v4')
    k('v_sub_u32 v6, v6, v7')
    k('v_mul_i32_i24 v7, 40, v6')
    k('v_mul_u32_u24 v8, 800, v4')
    k('v_add_u32 v7, v7, v8')
    k('v_lshl_add_u32 v7, v5, 1, v7')
    k('s_mul_i32 s20, s66, 3200')
    k('s_lshl_b32 s21, s67, 3')
    k('s_add_u32 s20, s20, s21')
    k('v_mov_b32 v9, 0x100000')
    BF = 16
    for kap in range(3):
        for j in range(8):
            e = 32 * kap + j
            k(f'v_add_u32 v10, {e}, v6')
            k('v_cmp_gt_u32 vcc, 20, v10')
            k(f'v_add_u32 v11, {e * 40}, v7')
            k('v_cndmask_b32 v11, v9, v11, vcc')
            k(f'buffer_load_ushort v{32 + kap * 8 + j}, v11, s[56:59], s20 offen')
    k('v_lshl_add_u32 v10, v4, 3, v5')
    k('v_mul_u32_u24 v10, 3840, v10')
    k('v_lshl_add_u32 v10, v3, 4, v10')
    k(f'v_add_u32 v11, {4 * 3840}, v10')
    k('s_mul_i32 s21, s64, 1280')
    k('s_mul_i32 s22, s66, 160')
    k('s_add_u32 s21, s21, s22')
    k(f's_mul_i32 s22, s72, {160 * 3840}')
    k('s_add_u32 s21, s21, s22')
    k('s_mul_i32 s22, s66, 307200')
    k('s_mul_i32 s23, s64, 5')
    k('s_add_u32 s23, s23, s67')
    k('s_lshl_b32 s23, s23, 10')
    k('s_add_u32 s22, s22, s23')
    k(f's_add_u32 s22, s22, {WBP}')
    k(f's_mul_i32 s23, s72, {5 * 15360}')
    k('s_add_u32 s22, s22, s23')
    k('v_lshlrev_b32 v12, 4, v1')
    for tt in range(5):
        for mt in range(2):
            for kap in range(3):
                k(f'buffer_load_dwordx4 {ar(((tt * 2 + mt) * 3 + kap) * 4, 4)}, v{10 + mt}, s[52:55], s21 offen offset:{kap * 64}')
        k(f's_add_u32 s21, s21, {32 * 3840}')
    k('s_waitcnt vmcnt(30)')
    for n in range(12):
        k(f'v_lshl_or_b32 v{BF + n}, v{33 + 2 * n}, 16, v{32 + 2 * n}')
    for tt in range(5):
        d = 56 + tt * 8
        k(f's_waitcnt vmcnt({6 * (4 - tt)})')
        for mt in range(2):
            for kap in range(3):
                c = '0' if kap == 0 else vr(d + 4 * mt, 4)
                k(f'v_mfma_f32_16x16x32_bf16 {vr(d + 4 * mt, 4)}, {ar(((tt * 2 + mt) * 3 + kap) * 4, 4)}, {vr(BF + 4 * kap, 4)}, {c}')
    for tt in range(5):
        d = 56 + tt * 8
        for p in range(4):
            k(f'v_cvt_pk_bf16_f32 v{d + p}, v{d + 2 * p}, v{d + 2 * p + 1}')
        k(f'buffer_store_dwordx4 {vr(d, 4)}, v12, s[4:7], s22 offen')
        k('s_add_u32 s22, s22, 15360')


def emit_packv(k):
    k(f's_sub_u32 s2, s2, {J_PACKV}')
    sdivmod(k, 66, 67, 2, 5)
    k(f's_mul_i32 s20, s66, {32 * 3840}')
    k('s_lshl_b32 s68, s67, 8')
    k('s_add_u32 s20, s20, s68')
    k('s_add_u32 s20, s20, 2560')
    k(f's_mov_b32 s21, {8 * 3840}')
    k(f's_mov_b32 s22, {4 * 3840}')
    k('s_mov_b32 s23, 3840')
    k('s_mul_i32 s24, s66, 15360')
    k(f's_add_u32 s24, s24, {WBP + 10240}')
    k('s_lshl_b32 s25, s67, 3')
    emit_pack(k, 52, 1)


def emit_packo2(k):
    k(f's_sub_u32 s2, s2, {J_PACKO2}')
    sdivmod(k, 66, 67, 2, 5)
    sdivmod(k, 64, 65, 66, 5)
    k('s_lshl_b32 s68, s65, 3')
    k('s_add_u32 s69, s68, 60')
    k('s_cmp_lt_u32 s65, 3')
    k('s_cselect_b32 s68, s68, s69')
    k('s_cmp_eq_u32 s65, 2')
    k('s_cselect_b32 s22, 64, 4')
    k('s_mul_i32 s22, s22, 1280')
    k('s_mul_i32 s69, s64, 160')
    k('s_add_u32 s68, s68, s69')
    k('s_mul_i32 s20, s68, 1280')
    k('s_lshl_b32 s68, s67, 8')
    k('s_add_u32 s20, s20, s68')
    k(f's_mov_b32 s21, {20 * 1280}')
    k('s_mov_b32 s23, 1280')
    k(f's_mul_i32 s24, s67, {8 * 20480}')
    k('s_lshl_b32 s68, s66, 10')
    k('s_add_u32 s24, s24, s68')
    k(f's_add_u32 s24, s24, {WO2P}')
    emit_pack(k, 60, 2)


def emit_bjobs(k, pfx, sjob, stride):
    srd_load(k, 52, 'wqkv')
    srd_load(k, 56, 'wphi')
    srd_load(k, 60, 'wo2')
    k('s_waitcnt lgkmcnt(0)')
    k.label(f'{pfx}_bj')
    k(f's_cmp_ge_u32 s{sjob}, {J_BEND}')
    k(f's_cbranch_scc1 {pfx}_bjdone')
    k(f's_mov_b32 s2, s{sjob}')
    k(f's_add_u32 s{sjob}, s{sjob}, {stride}')
    k(f's_cmp_ge_u32 s2, {J_PACKV}')
    k(f's_cbranch_scc1 {pfx}_bj1')
    emit_fold(k)
    k(f's_branch {pfx}_bj')
    k.label(f'{pfx}_bj1')
    k(f's_cmp_ge_u32 s2, {J_PACKO2}')
    k(f's_cbranch_scc1 {pfx}_bj2')
    emit_packv(k)
    k(f's_branch {pfx}_bj')
    k.label(f'{pfx}_bj2')
    emit_packo2(k)
    k(f's_branch {pfx}_bj')
    k.label(f'{pfx}_bjdone')


def emit_bmat(k):
    k('s_sub_u32 s8, s2, 8')
    k('s_and_b32 s9, s8, 31')
    k('s_bfe_u32 s12, s8, 0x10005')
    k('s_lshr_b32 s13, s8, 6')
    k('s_mov_b32 s20, -1')
    k('s_mov_b32 s21, 0x0fffffff')
    k('s_lshl_b32 s14, s12, 2')
    k('s_add_u32 s14, s14, s3')
    k(f's_mul_i32 s10, s9, {192 * 1280}')
    k('s_mul_i32 s11, s14, 160')
    k('s_add_u32 s10, s10, s11')
    k('s_mul_i32 s11, s3, 15360')
    stage_setup(k, 4, 5, 1, 1280, 160, 6, 8)
    k('v_add_u32 v5, s11, v5')
    st = Stager(k, 32, 4, 5, 10, 11, 0, 20, 1280, 160, 192, 96)
    st.issue_upto(0)
    k('v_and_b32 v6, 15, v1')
    k('v_lshrrev_b32 v7, 2, v6')
    k('v_lshlrev_b32 v7, 3, v7')
    k('v_and_b32 v6, 3, v6')
    k('v_add_u32 v6, v6, v7')
    k('v_mul_u32_u24 v6, 12288, v6')
    k('v_lshrrev_b32 v7, 4, v1')
    k('v_lshl_add_u32 v6, v7, 4, v6')
    k(f's_mul_i32 s15, s13, {160 * 12288}')
    k('s_mul_i32 s22, s9, 384')
    k('s_add_u32 s15, s15, s22')
    k('v_lshlrev_b32 v2, 4, v1')
    k('s_mul_i32 s22, s9, 40')
    k('s_mul_i32 s23, s14, 5')
    k('s_add_u32 s22, s22, s23')
    k('s_mul_i32 s22, s22, 20')
    k('s_mul_i32 s23, s13, 5')
    k('s_add_u32 s22, s22, s23')
    k('s_lshl_b32 s22, s22, 10')
    k(f's_add_u32 s22, s22, {BP}')
    AF, ACC, OUT = [8, 56], [104, 112], [120, 124]
    LA = 61440
    k('s_lshr_b32 s24, s3, 1')
    k(f's_mul_i32 s24, s24, {4 * 12288}')
    k('s_and_b32 s25, s3, 1')
    k('s_mul_i32 s25, s25, 192')
    k('s_add_u32 s15, s15, s24')
    k('s_add_u32 s15, s15, s25')
    k('s_mul_i32 s24, s3, 3072')

    def dma_a(base):
        for i in range(3):
            k(f's_add_u32 m0, s24, {base + i * 1024 - i * 64}')
            k(f'buffer_load_dwordx4 v6, s[16:19], s15 offen offset:{i * 64} lds')
        k(f's_add_u32 s15, s15, {32 * 12288}')

    dma_a(LA)
    st.foreign(3)
    for f in range(6):
        st.wait_rows(32 * (f + 1))
        for nt in range(5):
            for h in range(2):
                st.tread(ar((nt * 6 + f) * 4 + 2 * h, 2), 32 * f + 4 * h, 32 * nt)
        if st.issued < st.n:
            k('s_waitcnt lgkmcnt(0)')
            st.issue_upto(32 * (f + 1))
    k('s_waitcnt lgkmcnt(0)')
    k('s_barrier')
    for b in range(4):
        dma_a(b * 12288)

    def read_a(blk):
        base = LA if blk == 0 else (blk - 1) * 12288
        for n in range(12):
            k(f'ds_read_b128 {vr(AF[blk % 2] + 4 * n, 4)}, v{2 if blk else 3} offset:{(0 if blk == 0 else base) + n * 1024}')

    k(f'v_add_u32 v3, {LA}, v2')
    read_a(0)
    cnt = [0]

    def epi(p):
        a, o = ACC[p], OUT[p]
        for q in range(4):
            k(f'v_cvt_pk_bf16_f32 v{o + q}, v{a + 2 * q}, v{a + 2 * q + 1}')
        k(f'buffer_store_dwordx4 {vr(o, 4)}, v2, s[4:7], s23 offen')

    pend = None
    for blk in range(5):
        par = blk % 2
        k('s_waitcnt lgkmcnt(0)')
        for nt in range(5):
            p = cnt[0] % 2
            cnt[0] += 1
            for f in range(6):
                for mt in range(2):
                    d = ACC[p] + mt * 4
                    c = '0' if f == 0 else vr(d, 4)
                    k(f'v_mfma_f32_16x16x32_bf16 {vr(d, 4)}, {vr(AF[par] + (mt * 6 + f) * 4, 4)}, {ar((nt * 6 + f) * 4, 4)}, {c}')
                if f == 3 and pend is not None:
                    k(f's_add_u32 s23, s22, {pend[1]}')
                    epi(pend[0])
            pend = (p, nt * 20480 + blk * 1024)
            if nt == 3 and blk < 4:
                if blk == 0:
                    k('s_waitcnt vmcnt(3)')
                    k('s_barrier')
                read_a(blk + 1)
    k(f's_add_u32 s23, s22, {pend[1]}')
    epi(pend[0])
    if OPT.get('warm', 0):
        srd_load(k, 24, 'Wq')
        srd_load(k, 28, 'Wk')
        k('s_lshl_b32 s9, s8, 2')
        k('s_add_u32 s9, s9, s3')
        k('s_mul_i32 s9, s9, 7680')
        k('s_add_u32 s10, s9, 4096')
        k('s_waitcnt lgkmcnt(0)')
        for m in range(2):
            for i in range(8):
                k(f'buffer_load_dwordx4 {vr(8 + 4 * (m * 8 + i), 4)}, v2, {sr(24 + 4 * m, 4)}, {"s9" if i < 4 else "s10"} offen offset:{(i % 4) * 1024}')
    k('s_endpgm')


def make_prep():
    k = Kernel('prep_kernel', vgpr=0)
    srd_load(k, 4, 'ws')
    srd_load(k, 16, 'Wv')
    srd_load(k, 32, 'Wo')
    srd_load(k, 36, 'x')
    srd_load(k, 40, 'mem0')
    wave_lane(k, 3, 1)
    k('s_waitcnt lgkmcnt(0)')
    k('s_cmp_ge_u32 s2, 8')
    k('s_cbranch_scc1 prep_noprobe')
    k('s_cmp_lg_u32 s3, 0')
    k('s_cbranch_scc1 prep_end')
    hb_base(k, 20)
    k('s_lshl_b32 s21, s2, 7')
    k('s_add_u32 s20, s20, s21')
    k('s_add_u32 s20, s20, 6144')
    k('v_mov_b32 v2, 0')
    k('s_mov_b64 exec, 1')
    k('s_mov_b32 s24, -1')
    k('s_mov_b32 s25, -1')
    k('s_mov_b32 s26, 0')
    k.label('prep_ploop')
    for h in range(2):
        k('s_memtime s[28:29]')
        k('s_waitcnt lgkmcnt(0)')
        k('buffer_store_dword v2, v2, s[4:7], s20 offen sc1')
        k('s_waitcnt vmcnt(0)')
        k('s_memtime s[30:31]')
        k('s_waitcnt lgkmcnt(0)')
        k('s_sub_u32 s30, s30, s28')
        k(f's_min_u32 s{24 + h}, s{24 + h}, s30')
        k(f's_{"add" if h == 0 else "sub"}_u32 s20, s20, 8192')
    k('s_add_u32 s26, s26, 1')
    k('s_cmp_lt_u32 s26, 4')
    k('s_cbranch_scc1 prep_ploop')
    k('s_getreg_b32 s26, hwreg(HW_REG_XCC_ID)')
    k('s_bfe_u32 s26, s26, 0x10002')
    k('s_cmp_lt_u32 s24, s25')
    k('s_cselect_b32 s27, 1, 0')
    k('s_xor_b32 s27, s27, s26')
    k('v_mov_b32 v3, s27')
    k('s_lshl_b32 s21, s2, 2')
    k(f's_add_u32 s21, s21, {NEARW}')
    k('buffer_store_dword v3, v2, s[4:7], s21 offen')
    k('s_endpgm')
    k.label('prep_noprobe')
    k('s_cmp_ge_u32 s2, 264')
    k('s_cbranch_scc1 prep_nobmat')
    emit_bmat(k)
    k.label('prep_nobmat')
    k('s_sub_u32 s2, s2, 264')
    k('s_lshl_b32 s2, s2, 2')
    k('s_add_u32 s2, s2, s3')
    k(f's_cmp_ge_u32 s2, {J_INIT}')
    k('s_cbranch_scc1 prep_noto2')
    emit_ln4(k)
    k('s_endpgm')
    k.label('prep_noto2')
    k('v_lshlrev_b32 v3, 4, v1')
    for i in range(4):
        k(f'v_mov_b32 v{4 + i}, -1')
    k(f's_cmp_ge_u32 s2, {J_HB}')
    k('s_cbranch_scc1 prep_notinit')
    k(f's_sub_u32 s2, s2, {J_INIT}')
    k('s_lshr_b32 s44, s2, 2')
    k('s_and_b32 s45, s2, 3')
    k('v_and_b32 v2, 7, v1')
    k('v_mul_u32_u24 v2, 1280, v2')
    k('v_lshrrev_b32 v48, 3, v1')
    k('v_lshl_add_u32 v2, v48, 4, v2')
    for i in range(10):
        k(f'buffer_load_dwordx4 {vr(8 + 4 * i, 4)}, v2, s[40:43], 0 offen offset:{i * 128}')
    k(f's_mul_i32 s20, s44, {HC[1] - HC[0]}')
    k('s_mul_i32 s21, s45, 30720')
    k('s_add_u32 s20, s20, s21')
    k(f's_add_u32 s20, s20, {HC[0]}')
    k('s_add_u32 s21, s20, 10240')
    k('s_add_u32 s22, s20, 20480')
    k('s_waitcnt vmcnt(0)')
    for i in range(40):
        k(f'v_min_u32 v{8 + i}, -2, v{8 + i}')
    for i in range(10):
        if i and i % 4 == 0:
            k('s_add_u32 s20, s20, 4096')
            k('s_add_u32 s21, s21, 4096')
            k('s_add_u32 s22, s22, 4096')
        k(f'buffer_store_dwordx4 {vr(8 + 4 * i, 4)}, v3, s[4:7], s20 offen offset:{(i % 4) * 1024}')
        k(f'buffer_store_dwordx4 v[4:7], v3, s[4:7], s21 offen offset:{(i % 4) * 1024}')
        k(f'buffer_store_dwordx4 v[4:7], v3, s[4:7], s22 offen offset:{(i % 4) * 1024}')
    k('s_endpgm')
    k.label('prep_notinit')
    k(f's_cmp_ge_u32 s2, {J_FILL}')
    k('s_cbranch_scc1 prep_nothb')
    k(f's_sub_u32 s2, s2, {J_HB}')
    hb_base(k, 20)
    k('s_lshl_b32 s21, s2, 15')
    k('s_add_u32 s20, s20, s21')
    for hw in range(4):
        k('s_add_u32 s21, s20, 4096')
        for i in range(5):
            k(f'buffer_store_dwordx4 v[4:7], v3, s[4:7], {"s20" if i < 4 else "s21"} offen offset:{(i % 4) * 1024}')
        k('s_add_u32 s20, s20, 8192')
    k('s_endpgm')
    k.label('prep_nothb')
    k(f's_cmp_ge_u32 s2, {J_END}')
    k('s_cbranch_scc1 prep_end')
    k(f's_sub_u32 s2, s2, {J_FILL}')
    k('s_lshl_b32 s20, s2, 14')
    k(f's_add_u32 s21, s20, {HA[0]}')
    k(f's_add_u32 s22, s20, {STB - 20 * 16384}')
    k(f's_add_u32 s23, s20, {FL - 40 * 16384}')
    k('s_cmp_lt_u32 s2, 20')
    k('s_cselect_b32 s20, s21, s22')
    k('s_cmp_lt_u32 s2, 40')
    k('s_cselect_b32 s20, s20, s23')
    k('s_cselect_b32 s21, -1, 0')
    for i in range(4):
        k(f'v_mov_b32 v{4 + i}, s21')
    for i in range(16):
        if i and i % 4 == 0:
            k('s_add_u32 s20, s20, 4096')
        k(f'buffer_store_dwordx4 v[4:7], v3, s[4:7], s20 offen offset:{(i % 4) * 1024}')
    k.label('prep_end')
    k('s_endpgm')
    assert HA[1] - HA[0] == 163840
    grid = (J_END + 3) // 4 + 264
    return k, grid, 61440 + 12288
```

```python
from gen_common import *
import math

SCALE_L2E = (192 ** -0.5) * math.log2(math.e)
SPIN_MAX = 1 << 18
STAMP_OFF = DIAG
OPT = dict(bdelay=6, bsl=1, bre=3, cdelay=3, cre=3, aat=26, aat0=16, a2=0, asl=0, are=2, ysplit=0, cspec=0, csl=0)

L_MEM = 0
L_QKP = 10240
L_POP = L_QKP + 12288
L_YOP = L_POP + 5120
L_END = L_YOP + 3072

V_ML, V_LANE, V_C = 0, 1, 2
V_MR = (None, 3, 4, 5)
V_C3, V_QKR, V_AST, V_L16, V_AMM = 6, 7, 8, 9, 10
V_PW, V_PMW, V_PR, V_YW, V_YR, V_YG, V_UL = 11, 12, 13, 14, 15, 16, 17
V_RA, V_RB, V_MRM, V_BST, V_BLD, V_CST = 18, 19, 20, 21, 22, 23
V_T0, V_T1, V_T2, V_T3 = 24, 25, 26, 27
V_S1 = 24
MEM, MR1, QK, YA, KXA, KXB, V_SENT, UF, T = 28, 48, 68, 92, 104, 108, 110, 112, 128
KC, KN = 160, 172
V_S2, V_SD2 = 104, T + 20
V_FU, V_FK, V_FUA, V_ZERO = 108, 109, 110, 111
XR = QK + 12
WQKV = 152


def wqk(i, tau, lo=False, off=0, cnt=4):
    n = i * 5 + tau
    if lo and 23 <= n < 26:
        return ar(184 + 4 * (n - 23) + off, cnt)
    return vr(WQKV + 4 * n + off, cnt) if n < 26 else ar(240 + 4 * (n - 26) + off, cnt)


def wb(i, tau):
    return ar((i * 20 + tau) * 4, 4)


S_W, S_X, S_CU, S_HQ, S_GS = 3, 8, 9, 10, 11
S_SEG, S_TAGA, S_TAGB, S_SPIN = 12, 13, 14, 15
S_CRD, S_CWR = 16, 17
S_AST, S_ALD = 18, 19
S_BST, S_BLD = 20, 21
S_KX, S_KM, S_UL, S_YG = 22, 23, 24, 25
S_CRS = 26
S_T0, S_T1, S_T2 = 27, 28, 29
S_SC = 30
M_AST, M_BST, M_LO32, M_Q0, M_CHI, M_C8G2 = 32, 34, 36, 38, 40, 42
S_DBG = 44
S_STA = 48
S_DC, S_BLD2, S_DB, S_BST2, S_PX, S_B = 64, 65, 66, 67, 68, 69
S_LAYER, S_FL = 70, 71
S_KRDY, S_URDY, S_FK, S_FU, S_FKM, S_FY = 72, 73, 74, 75, 76, 77
M_C8 = 86
S_YGN, S_KMN = 80, 81
V_YF = T + 20


def smask(k, m, val):
    lo, hi = val & 0xffffffff, val >> 32
    for r, v in ((m, lo), (m + 1, hi)):
        k(f's_mov_b32 s{r}, {-1 if v == 0xffffffff else hex(v)}')


def emit_rec(k, name, stamps=False, nsteps=64):
    k(f's_lshr_b32 s{S_B}, s2, 7')
    k(f's_bfe_u32 s{S_CU}, s2, 0x40003')
    k(f's_lshl_b32 s{S_X}, s{S_PX}, 1')
    k(f's_add_u32 s{S_X}, s{S_X}, s{S_B}')
    k(f's_lshr_b32 s{S_HQ}, s{S_CU}, 2')
    k(f's_lshl_b32 s{S_T0}, s{S_X}, 2')
    k(f's_add_u32 s{S_HQ}, s{S_HQ}, s{S_T0}')
    k(f's_and_b32 s{S_GS}, s{S_CU}, 3')
    smask(k, M_LO32, 0xffffffff)
    smask(k, M_CHI, 0xff00ff00ff00ff00)
    smask(k, M_C8G2, 0x00ff00ff)
    smask(k, M_C8, 0x00ff00ff00ff00ff)
    k(f's_cmp_eq_u32 s{S_W}, 0')
    k(f's_cselect_b32 s{M_AST}, s{M_C8G2}, 0')
    k(f's_mov_b32 s{M_AST + 1}, s{M_C8G2}')
    k(f's_cmp_lt_u32 s{S_W}, 2')
    k(f's_mov_b32 s{M_BST}, s{M_C8G2}')
    k(f's_cselect_b32 s{M_BST + 1}, s{M_C8G2}, 0')
    k(f's_cselect_b32 s{M_Q0 + 1}, 0x000f000f, 0')
    k(f's_cselect_b32 s{M_Q0}, 0x000f000f, 15')
    k(f's_mov_b32 s{S_SC}, {f32(SCALE_L2E)}')
    c, g, c7, tmp = V_T0, V_T1, V_T2, V_T3
    chi = T
    idx = T + 1
    k(f'v_and_b32 v{c}, 15, v{V_LANE}')
    k(f'v_lshrrev_b32 v{g}, 4, v{V_LANE}')
    k(f'v_and_b32 v{c7}, 7, v{V_LANE}')
    k(f'v_lshrrev_b32 v{chi}, 3, v{c}')
    k(f'v_lshlrev_b32 v{V_L16}, 4, v{V_LANE}')
    k(f'v_sub_u32 v{V_MRM}, 0, v{chi}')
    k(f'v_not_b32 v{V_ML}, v{V_MRM}')
    k(f'v_lshlrev_b32 v{idx}, 7, v{g}')
    k(f'v_lshl_add_u32 v{idx}, v{c7}, 4, v{idx}')
    for gam in range(4):
        k(f's_add_u32 s{S_T0}, s{S_W}, {gam}')
        k(f's_and_b32 s{S_T0}, s{S_T0}, 3')
        k(f's_mul_i32 s{S_T0}, s{S_T0}, 2560')
        k(f'v_add_u32 v{V_C3 if gam == 0 else V_MR[gam]}, s{S_T0}, v{idx}')
    k(f'v_lshl_add_u32 v{V_C}, v{chi}, 9, v{V_C3}')
    k(f'v_lshlrev_b32 v{V_PR}, 8, v{g}')
    k(f'v_lshl_add_u32 v{V_PR}, v{c7}, 4, v{V_PR}')
    k(f'v_lshl_add_u32 v{V_QKR}, v{chi}, 11, v{V_PR}')
    k(f's_cmp_eq_u32 s{S_W}, 0')
    k(f's_cselect_b32 s{S_T0}, 7, 5')
    k(f's_cselect_b32 s{S_T1}, 0, {1024 - 32}')
    k(f'v_lshlrev_b32 v{V_AST}, s{S_T0}, v{c7}')
    k(f'v_lshl_add_u32 v{V_AST}, v{g}, 4, v{V_AST}')
    k(f'v_add_u32 v{V_AST}, s{S_T1}, v{V_AST}')
    k(f'v_lshlrev_b32 v{V_AMM}, 2, v{V_LANE}')
    k(f'v_add_u32 v{V_AMM}, 1024, v{V_AMM}')
    k(f's_cmp_lt_u32 s{S_W}, 2')
    k(f's_cselect_b32 s{S_T0}, 6, 5')
    k(f'v_lshlrev_b32 v{V_BST}, s{S_T0}, v{c7}')
    k(f'v_lshl_add_u32 v{V_BST}, v{g}, 4, v{V_BST}')
    k(f's_lshl_b32 s{S_T0}, s{S_W}, 9')
    k(f'v_add_u32 v{V_BST}, s{S_T0}, v{V_BST}')
    k(f'v_lshrrev_b32 v{tmp}, 3, v{V_LANE}')
    k(f'v_and_b32 v{V_PW}, 3, v{V_LANE}')
    k(f'v_lshlrev_b32 v{V_PW}, 8, v{V_PW}')
    k(f'v_lshl_add_u32 v{V_PW}, v{tmp}, 4, v{V_PW}')
    k(f'v_and_b32 v{V_PMW}, 4, v{V_LANE}')
    k(f'v_lshl_add_u32 v{V_PW}, v{V_PMW}, 1, v{V_PW}')
    k(f's_lshl_b32 s{S_T0}, s{S_W}, 10')
    k(f'v_add_u32 v{V_PW}, s{S_T0}, v{V_PW}')
    k(f'v_add_u32 v{V_YR}, s{S_T0}, v{V_L16}')
    k(f'v_lshlrev_b32 v{V_UL}, 4, v{g}')
    k(f'v_lshl_add_u32 v{V_UL}, v{c}, 6, v{V_UL}')
    k(f'v_add_u32 v{V_UL}, s{S_T0}, v{V_UL}')
    k(f'v_lshlrev_b32 v{V_PMW}, 1, v{c7}')
    k(f'v_lshl_add_u32 v{V_PMW}, v{tmp}, 4, v{V_PMW}')
    k(f's_lshl_b32 s{S_T0}, s{S_W}, 8')
    k(f's_add_u32 s{S_T1}, s{S_T0}, 4096')
    k(f'v_add_u32 v{V_PMW}, s{S_T1}, v{V_PMW}')
    k(f'v_lshlrev_b32 v{V_YW}, 3, v{g}')
    k(f'v_lshl_add_u32 v{V_YW}, v{c}, 4, v{V_YW}')
    k(f'v_add_u32 v{V_YW}, s{S_T0}, v{V_YW}')
    k(f'v_lshlrev_b32 v{V_YG}, 3, v{g}')
    k(f'v_lshl_add_u32 v{V_YG}, v{c7}, 4, v{V_YG}')
    k(f'v_lshl_add_u32 v{V_YG}, v{chi}, 8, v{V_YG}')
    k(f's_and_b32 s{S_T0}, s{S_W}, 1')
    k(f's_lshl_b32 s{S_T0}, s{S_T0}, 9')
    k(f'v_add_u32 v{V_YG}, s{S_T0}, v{V_YG}')
    e, pq = T + 2, T + 3
    k(f'v_and_b32 v{e}, 3, v{V_LANE}')
    k(f'v_bfe_u32 v{pq}, v{V_LANE}, 2, 2')
    k(f'v_mul_u32_u24 v{pq}, 1280, v{pq}')
    k(f'v_lshl_add_u32 v{pq}, v{e}, 4, v{pq}')
    k(f'v_lshrrev_b32 v{tmp}, 1, v{e}')
    k(f'v_and_b32 v{e}, 1, v{e}')
    k(f's_cmp_lt_u32 s{S_W}, 2')
    k(f's_cbranch_scc0 {name}_bhi')
    k(f'v_lshl_add_u32 v{V_BLD}, v{g}, 6, v{pq}')
    k(f's_lshl_b32 s{S_T0}, s{S_W}, 9')
    k(f's_lshl_b32 s{S_T1}, s{S_B}, 8')
    k(f's_add_u32 s{S_T0}, s{S_T0}, s{S_T1}')
    k(f'v_add_u32 v{V_BLD}, s{S_T0}, v{V_BLD}')
    k(f'v_lshlrev_b32 v{V_CST}, 7, v{tmp}')
    k(f'v_lshl_add_u32 v{V_CST}, v{g}, 4, v{V_CST}')
    k(f's_lshl_b32 s{S_T0}, s{S_W}, 8')
    k(f's_branch {name}_bdone')
    k.label(f'{name}_bhi')
    k(f's_lshl_b32 s{S_T0}, s{S_B}, 1')
    k(f's_add_u32 s{S_T0}, s{S_T0}, s{S_W}')
    k(f's_add_u32 s{S_T0}, s{S_T0}, 14')
    k(f's_lshl_b32 s{S_T0}, s{S_T0}, 6')
    k(f'v_add_u32 v{V_BLD}, s{S_T0}, v{pq}')
    k(f'v_lshlrev_b32 v{V_CST}, 4, v{tmp}')
    k(f's_lshl_b32 s{S_T0}, s{S_W}, 5')
    k(f's_add_u32 s{S_T0}, s{S_T0}, {512 - 64}')
    k.label(f'{name}_bdone')
    k(f'v_lshl_add_u32 v{V_CST}, v{e}, 3, v{V_CST}')
    k(f's_lshl_b32 s{S_T1}, s{S_B}, 6')
    k(f's_add_u32 s{S_T0}, s{S_T0}, s{S_T1}')
    k(f'v_add_u32 v{V_CST}, s{S_T0}, v{V_CST}')
    k(f's_cmp_eq_u32 s{S_W}, 1')
    k(f's_cbranch_scc1 {name}_r1')
    k(f'v_add_u32 v{V_RA}, 4096, v{V_L16}')
    k(f'v_add_u32 v{V_RB}, 8192, v{V_L16}')
    k(f's_branch {name}_rdone')
    k.label(f'{name}_r1')
    k(f's_lshl_b32 s{S_T0}, s{S_GS}, 9')
    k(f'v_add_u32 v{V_RA}, s{S_T0}, v{idx}')
    k(f's_lshl_b32 s{S_T0}, s{S_GS}, 8')
    k(f's_add_u32 s{S_T0}, s{S_T0}, 2048')
    k(f'v_lshrrev_b32 v{V_RB}, 1, v{idx}')
    k(f'v_add_u32 v{V_RB}, s{S_T0}, v{V_RB}')
    k.label(f'{name}_rdone')
    k(f's_mul_i32 s{S_AST}, s{S_X}, 20480')
    k(f's_mul_i32 s{S_T0}, s{S_LAYER}, {HA[1] - HA[0]}')
    k(f's_add_u32 s{S_AST}, s{S_AST}, s{S_T0}')
    k(f's_add_u32 s{S_AST}, s{S_AST}, {HA[0]}')
    k(f's_mul_i32 s{S_CRD}, s{S_PX}, 30720')
    k(f's_mul_i32 s{S_T0}, s{S_LAYER}, {HC[1] - HC[0]}')
    k(f's_add_u32 s{S_CRD}, s{S_CRD}, s{S_T0}')
    k(f's_add_u32 s{S_CRD}, s{S_CRD}, {HC[0]}')
    k(f's_add_u32 s{S_CWR}, s{S_CRD}, 10240')
    k(f's_add_u32 s{S_CRS}, s{S_CRD}, 20480')
    k(f's_mul_i32 s{S_T0}, s{S_CU}, 640')
    k(f'v_add_u32 v{V_CST}, s{S_T0}, v{V_CST}')
    k(f's_mul_i32 s{S_T0}, s{S_W}, 5120')
    k(f's_add_u32 s{S_ALD}, s{S_AST}, s{S_T0}')
    k(f's_mul_i32 s{S_T0}, s{S_CU}, 1280')
    k(f's_add_u32 s{S_AST}, s{S_AST}, s{S_T0}')
    k(f's_mul_i32 s{S_KX}, s{S_HQ}, 12288')
    k(f's_lshl_b32 s{S_T0}, s{S_GS}, 10')
    k(f's_add_u32 s{S_KX}, s{S_KX}, s{S_T0}')
    k(f's_add_u32 s{S_KX}, s{S_KX}, {QKVF + QKVF_M}')
    k(f's_mul_i32 s{S_KM}, s{S_HQ}, 3072')
    k(f's_add_u32 s{S_KM}, s{S_KM}, {KM}')
    k(f's_mul_i32 s{S_UL}, s{S_X}, {4 * 40960}')
    k(f's_mul_i32 s{S_T0}, s{S_CU}, 2560')
    k(f's_add_u32 s{S_UL}, s{S_UL}, s{S_T0}')
    k(f's_add_u32 s{S_UL}, s{S_UL}, {UU}')
    k(f's_mul_i32 s{S_YG}, s{S_X}, 40960')
    k(f's_add_u32 s{S_YG}, s{S_YG}, s{S_T0}')
    k(f's_add_u32 s{S_YG}, s{S_YG}, {YM}')
    k(f's_mov_b32 s{S_SEG}, 0')
    k(f's_mov_b32 s{S_YGN}, s{S_YG}')
    k(f's_mov_b32 s{S_KMN}, s{S_KM}')
    k(f's_mov_b32 s{S_DB}, {32 * 16384}')
    k(f's_mov_b32 s{S_TAGA}, 0')
    k(f's_mov_b32 s{S_TAGB}, 0')
    k(f's_lshl_b32 s{S_T0}, s{S_HQ}, 7')
    k(f's_lshl_b32 s{S_T1}, s{S_GS}, 2')
    k(f's_add_u32 s{S_T0}, s{S_T0}, s{S_T1}')
    k(f's_add_u32 s{S_FK}, s{S_T0}, s{S_FL}')
    k(f's_add_u32 s{S_FKM}, s{S_FK}, {FL_KM - FL_K}')
    k(f's_add_u32 s{S_FY}, s{S_FKM}, 16')
    k(f's_lshr_b32 s{S_T0}, s{S_CU}, 2')
    k(f's_lshl_b32 s{S_T0}, s{S_T0}, 2')
    k(f's_lshl_b32 s{S_T1}, s{S_X}, 9')
    k(f's_add_u32 s{S_FU}, s{S_T0}, s{S_T1}')
    k(f's_add_u32 s{S_FU}, s{S_FU}, s{S_FL}')
    k(f's_add_u32 s{S_FU}, s{S_FU}, {FL_U}')
    k(f'v_and_b32 v{V_FUA}, 3, v{V_LANE}')
    k(f'v_lshlrev_b32 v{V_FUA}, 7, v{V_FUA}')
    k(f'v_mov_b32 v{V_ZERO}, 0')
    k(f'v_mov_b32 v{V_FU}, 0')
    k(f'v_mov_b32 v{V_FK}, 0')
    k(f's_mov_b32 s{S_KRDY}, 0')
    k(f's_mov_b32 s{S_URDY}, 0')
    hb_base(k, S_BLD)
    k(f's_lshl_b32 s{S_T0}, s{S_LAYER}, 20')
    k(f's_add_u32 s{S_BLD}, s{S_BLD}, s{S_T0}')
    k(f's_lshl_b32 s{S_T0}, s{S_CU}, 15')
    k(f's_add_u32 s{S_BLD}, s{S_BLD}, s{S_T0}')
    k(f's_add_u32 s{S_STA + 8}, s4, {NEARW}')
    k(f's_addc_u32 s{S_STA + 9}, s5, 0')
    k(f's_load_dwordx8 s[{S_STA}:{S_STA + 7}], s[{S_STA + 8}:{S_STA + 9}], 0')
    k(f's_getreg_b32 s{S_T0}, hwreg(HW_REG_XCC_ID)')
    k(f's_and_b32 s{S_T0}, s{S_T0}, 7')
    k(f's_lshr_b32 s{S_STA + 10}, s{S_T0}, 2')
    k('s_waitcnt lgkmcnt(0)')
    for i in range(1, 8):
        k(f's_add_u32 s{S_STA}, s{S_STA}, s{S_STA + i}')
    k(f's_cmp_ge_u32 s{S_STA}, 4')
    k(f's_cselect_b32 s{S_STA}, 0, 1')
    k(f's_xor_b32 s{S_STA}, s{S_STA}, s{S_STA + 10}')
    k(f's_lshl_b32 s{S_STA + 10}, s{S_STA}, 13')
    k(f's_mul_i32 s{S_T1}, s{S_T0}, s{S_T0}')
    k(f's_lshl_b32 s{S_T1}, s{S_T1}, 14')
    k(f's_lshl_b32 s{S_T0}, s{S_T0}, 6')
    k(f's_add_u32 s{S_T0}, s{S_T0}, s{S_T1}')
    k(f's_add_u32 s31, s{S_T0}, 1')
    k(f's_lshl_b32 s{S_T2}, s{S_PX}, 2')
    k(f'v_mov_b32 v{V_T1}, 0')
    k(f's_cmp_lg_u32 s{S_W}, 0')
    k(f's_cbranch_scc1 {name}_noatom')
    k('s_mov_b64 exec, 1')
    k(f'v_mov_b32 v{V_T0}, s31')
    k(f'buffer_atomic_add v{V_T0}, v{V_T1}, s[{S_DBG}:{S_DBG + 3}], s{S_T2} offen sc1')
    k('s_mov_b64 exec, -1')
    k.label(f'{name}_noatom')
    k(f's_mul_i32 s{S_STA}, s{S_HQ}, 384')
    k(f's_mul_i32 s{S_T1}, s{S_GS}, 96')
    k(f's_add_u32 s{S_STA}, s{S_STA}, s{S_T1}')
    k(f's_mul_i32 s{S_T1}, s{S_W}, {160 * 12288}')
    k(f's_add_u32 s{S_STA}, s{S_STA}, s{S_T1}')
    k(f's_mov_b32 s{S_STA + 1}, s{S_STA}')
    k(f's_mul_i32 s{S_STA + 2}, s{S_W}, 30720')
    k(f's_add_u32 s{S_STA + 2}, s{S_STA + 2}, 32768')
    k(f's_add_u32 s{S_STA + 3}, s{S_STA + 2}, 15360')
    stage_setup(k, T + 4, T + 5, V_LANE, 12288, 96, T + 6, 8)
    k(f'v_add_u32 v{T + 5}, s{S_STA + 2}, v{T + 5}')
    for m in range(2):
        st = Stager(k, 92 + 4 * m, T + 4, T + 5, S_STA + m, S_STA + 2 + m, 0, 82, 12288, 96, 160, 160)
        st.issue_upto(0)
    k(f'v_and_b32 v{T}, 15, v{V_LANE}')
    k(f's_mul_i32 s{S_T0}, s{S_CU}, 40')
    k(f'v_add_u32 v{T}, s{S_T0}, v{T}')
    k(f'v_lshrrev_b32 v{T + 1}, 4, v{T}')
    k(f'v_mul_u32_u24 v{T + 1}, 20480, v{T + 1}')
    k(f'v_and_b32 v{T}, 15, v{T}')
    k(f'v_lshl_add_u32 v{T + 1}, v{T}, 4, v{T + 1}')
    k(f'v_lshrrev_b32 v{T}, 4, v{V_LANE}')
    k(f'v_lshl_add_u32 v{T + 1}, v{T}, 8, v{T + 1}')
    k(f'v_and_b32 v{T}, 7, v{V_LANE}')
    k(f's_add_u32 s{S_T0}, s{S_T0}, 32')
    k(f'v_add_u32 v{T}, s{S_T0}, v{T}')
    k(f'v_lshrrev_b32 v{T + 2}, 4, v{T}')
    k(f'v_mul_u32_u24 v{T + 2}, 20480, v{T + 2}')
    k(f'v_and_b32 v{T}, 15, v{T}')
    k(f'v_lshl_add_u32 v{T + 2}, v{T}, 4, v{T + 2}')
    k(f'v_lshrrev_b32 v{T}, 4, v{V_LANE}')
    k(f'v_lshl_add_u32 v{T + 2}, v{T}, 8, v{T + 2}')
    k(f'v_bfe_u32 v{T}, v{V_LANE}, 3, 1')
    k(f'v_mul_u32_u24 v{T}, {40 * 20480}, v{T}')
    k(f'v_add_u32 v{T + 2}, v{T + 2}, v{T}')
    k(f's_lshl_b32 s{S_T0}, s{S_X}, 2')
    k(f's_and_b32 s{S_T1}, s{S_W}, 1')
    k(f's_lshl_b32 s{S_T1}, s{S_T1}, 1')
    k(f's_add_u32 s{S_T1}, s{S_T1}, s{S_T0}')
    k(f's_mul_i32 s{S_STA + 5}, s{S_T1}, {40 * 20480}')
    k(f's_add_u32 s{S_STA + 5}, s{S_STA + 5}, {BP}')
    k(f's_add_u32 s{S_T0}, s{S_T0}, s{S_W}')
    k(f's_mul_i32 s{S_T0}, s{S_T0}, {40 * 20480}')
    k(f's_add_u32 s{S_T0}, s{S_T0}, {BP}')

    def wb_tile(gam, i):
        k(f's_add_u32 s{S_T1}, s{S_W}, {gam}')
        k(f's_and_b32 s{S_T1}, s{S_T1}, 3')
        k(f's_mul_i32 s{S_T1}, s{S_T1}, 5120')
        k(f's_add_u32 s{S_T1}, s{S_T1}, s{S_T0 if i < 2 else S_STA + 5}')
        if i == 1:
            k(f's_add_u32 s{S_T1}, s{S_T1}, 20480')
        k(f's_add_u32 s{S_STA + 4}, s{S_T1}, 1024')
        va = T + 1 if i < 2 else T + 2
        for tt in range(5):
            if tt == 0:
                k(f'buffer_load_dwordx4 {wb(i, gam * 5)}, v{va}, s[4:7], s{S_T1} offen')
            else:
                k(f'buffer_load_dwordx4 {wb(i, gam * 5 + tt)}, v{va}, s[4:7], s{S_STA + 4} offen offset:{(tt - 1) * 1024}')

    for gam in range(4):
        for i in range(2):
            wb_tile(gam, i)
        if gam == 2:
            k('s_waitcnt vmcnt(30)')
            for i in range(6):
                for tau in range(5):
                    for h in range(2):
                        o_ = (i // 3) * 15360 + (32 * tau + 4 * h) * 96 + 32 * (i % 3)
                        k(f'ds_read_b64_tr_b16 {wqk(i, tau, False, 2 * h, 2)}, v{T + 5} offset:{o_}')
                        if 23 <= i * 5 + tau < 26:
                            k(f'ds_read_b64_tr_b16 {wqk(i, tau, True, 2 * h, 2)}, v{T + 5} offset:{o_}')
    k('s_waitcnt lgkmcnt(0)')
    k(f's_cmp_lt_u32 s{S_W}, 2')
    k(f's_cbranch_scc1 {name}_not2')
    for gam in range(4):
        wb_tile(gam, 2)
    k.label(f'{name}_not2')
    k('s_waitcnt lgkmcnt(0)')

    def wait_flag(srdy, sflag, add, n):
        lab = k.newlabel('wf')
        k(f's_add_u32 s{S_T0}, s{S_SEG}, {add}')
        k(f's_min_u32 s{S_T0}, s{S_T0}, 64')
        k(f's_cmp_ge_u32 s{srdy}, s{S_T0}')
        k(f's_cbranch_scc1 {lab}_ok')
        k(f's_mov_b32 s{S_T1}, 0')
        k.label(lab)
        k(f'v_mov_b32 v{V_T0}, 0')
        if n == 1:
            k(f'buffer_load_dword v{V_T0}, v{V_T0}, s[4:7], s{sflag} offen sc1')
            k('s_waitcnt vmcnt(0)')
        else:
            k(f'v_and_b32 v{V_T0}, 3, v{V_LANE}')
            k(f'v_lshlrev_b32 v{V_T0}, 7, v{V_T0}')
            k(f'buffer_load_dword v{V_T0}, v{V_T0}, s[4:7], s{sflag} offen sc1')
            k('s_waitcnt vmcnt(0)')
            k(f'v_min_u32_dpp v{V_T0}, v{V_T0}, v{V_T0} quad_perm:[1,0,3,2] row_mask:0xf bank_mask:0xf')
            k(f'v_min_u32_dpp v{V_T0}, v{V_T0}, v{V_T0} quad_perm:[2,3,0,1] row_mask:0xf bank_mask:0xf')
        k(f'v_readfirstlane_b32 s{srdy}, v{V_T0}')
        k(f's_cmp_ge_u32 s{srdy}, s{S_T0}')
        k(f's_cbranch_scc1 {lab}_ok')
        k('s_sleep 2')
        k(f's_add_u32 s{S_T1}, s{S_T1}, 1')
        k(f's_cmp_lt_u32 s{S_T1}, {SPIN_MAX}')
        k(f's_cbranch_scc1 {lab}')
        k(f's_branch {name}_fail')
        k.label(lab + '_ok')

    def put_flag(sflag, add):
        k(f's_add_i32 s{S_T0}, s{S_SEG}, {add}')
        k(f'v_mov_b32 v{V_T0}, s{S_T0}')
        k(f'v_mov_b32 v{V_T1}, 0')
        k('s_mov_b64 exec, 1')
        k(f'buffer_store_dword v{V_T0}, v{V_T1}, s[4:7], s{sflag} offen sc1')
        k('s_mov_b64 exec, -1')

    def pref_kx(add, a=KN, wf=True):
        if wf:
            wait_flag(S_KRDY, S_FK, add, 1)
        for n, va in enumerate((V_L16, V_RA, V_RB)):
            k(f'buffer_load_dwordx4 {ar(a + 4 * n, 4)}, v{va}, s[4:7], s{S_KX} offen sc1')
        k(f's_add_u32 s{S_KX}, s{S_KX}, {32 * 12288}')

    def pref_u(wf=True):
        for hh in range(4):
            k(f'buffer_load_dwordx4 {vr(UF + 4 * hh, 4)}, v{V_UL}, s[4:7], s{S_UL} offen sc1')
            k(f's_add_u32 s{S_UL}, s{S_UL}, {40960 if hh < 3 else 29 * 40960}')

    k(f's_cmp_lg_u32 s{S_W}, 0')
    k(f's_cbranch_scc1 {name}_nokx')
    pref_kx(1, KC)
    k.label(f'{name}_nokx')
    k(f'v_mov_b32 v{V_T1}, 0')
    for n in range(12):
        k(f'v_mov_b32 v{XR + n}, -1')
    for n in range(20):
        k(f'v_mov_b32 v{T + n}, -1')
    k(f's_mov_b32 s{S_SPIN}, 0')
    k.label(f'{name}_census')
    k(f'buffer_load_dword v{V_T0}, v{V_T1}, s[{S_DBG}:{S_DBG + 3}], s{S_T2} offen sc1')
    k('s_waitcnt vmcnt(0)')
    k(f'v_readfirstlane_b32 s{S_T0}, v{V_T0}')
    k(f's_and_b32 s{S_T1}, s{S_T0}, 63')
    k(f's_cmp_eq_u32 s{S_T1}, 32')
    k(f's_cbranch_scc1 {name}_census_done')
    k('s_sleep 4')
    k(f's_add_u32 s{S_SPIN}, s{S_SPIN}, 1')
    k(f's_cmp_lt_u32 s{S_SPIN}, {SPIN_MAX}')
    k(f's_cbranch_scc1 {name}_census')
    k(f's_branch {name}_fail')
    k.label(f'{name}_census_done')
    k(f's_mov_b32 s{S_STA}, s{S_STA + 10}')
    k(f's_add_u32 s{S_BLD}, s{S_BLD}, s{S_STA}')
    k(f's_add_u32 s{S_BLD2}, s{S_BLD}, 16384')
    k(f's_lshr_b32 s{S_T1}, s{S_X}, 2')
    k(f's_lshl_b32 s{S_T1}, s{S_T1}, 14')
    k(f's_and_b32 s{S_T2}, s{S_X}, 3')
    k(f's_mul_i32 s{S_T2}, s{S_T2}, 1280')
    k(f's_add_u32 s{S_T1}, s{S_T1}, s{S_T2}')
    k(f's_add_u32 s{S_BST2}, s{S_BLD}, s{S_T1}')
    k(f's_lshl_b32 s{S_STA}, s{S_STA}, 1')
    k(f's_sub_u32 s{S_BST}, s{S_BST2}, s{S_STA}')
    k(f's_add_u32 s{S_BST}, s{S_BST}, 8192')
    k('s_lshl_b32 s31, s31, 5')
    k(f's_and_b32 s{S_T0}, s{S_T0}, {(1 << 25) - 1}')
    k(f's_cmp_eq_u32 s{S_T0}, s31')
    k(f's_cselect_b32 s31, 0, 4')
    k(f's_add_u32 s31, s31, s{S_W}')
    for v in range(1, 8):
        k(f's_cmp_eq_u32 s31, {v}')
        k(f's_cbranch_scc1 {name}_loop{v}')

    def spin(lab):
        k(f's_add_u32 s{S_SPIN}, s{S_SPIN}, 1')
        k(f's_cmp_lt_u32 s{S_SPIN}, {SPIN_MAX}')
        k(f's_cbranch_scc1 {lab}')
        k(f's_branch {name}_fail')

    def stamp(i):
        if stamps:
            k(f's_mem{"" if (i == 7 and OPT.get("clk")) else "real"}time s[{S_STA + 2 * i}:{S_STA + 2 * i + 1}]')

    def ymfma(gam, tt, i):
        src = MEM if gam % 2 == 0 else MR1
        tau = gam * 5 + tt
        c = '0' if tau == 0 else vr(YA + 4 * i, 4)
        k(f'v_mfma_f32_16x16x32_bf16 {vr(YA + 4 * i, 4)}, {vr(src + 4 * tt, 4)}, {wb(i, tau)}, {c}')

    def mread(gam, tt):
        dst = MEM if gam % 2 == 0 else MR1
        k(f'ds_read_b128 {vr(dst + 4 * tt, 4)}, v{V_MR[gam]} offset:{L_MEM + tt * 512}')

    def tagcheck(regs_in, stag, t0):
        n = len(regs_in)
        for q in range(n // 2):
            k(f'v_bitop3_b32 v{t0 + q}, v{regs_in[2 * q]}, v{regs_in[2 * q + 1]}, s{stag} bitop3:0x7e')
        regs = [t0 + q for q in range(n // 2)]
        while len(regs) > 1:
            if len(regs) >= 3:
                k(f'v_or3_b32 v{regs[0]}, v{regs[0]}, v{regs[1]}, v{regs[2]}')
                regs = regs[3:] + [regs[0]]
            else:
                k(f'v_or_b32 v{regs[0]}, v{regs[0]}, v{regs[1]}')
                regs = [regs[0]]
        k(f'v_and_b32 v{regs[0]}, 1, v{regs[0]}')
        k(f'v_cmp_ne_u32 vcc, 0, v{regs[0]}')

    def emit_loop(variant):
        slow = variant >= 4
        role = variant % 4
        nti = 2 if role < 2 else 3
        sc = ' sc1' if slow else ''
        L = f'{name}_loop{variant}'

        def split(tau, right):
            u, odd = tau // 2, tau % 2
            dst = (MR1 if right else MEM) + 4 * tau
            msk = V_MRM if right else V_ML
            out = []
            for r in range(4):
                src = XR + 4 * u + r
                if (odd == 1) == right or u == 2:
                    out.append(f'v_and_b32 v{dst + r}, v{src}, v{msk}')
                else:
                    out.append(f'v_and_b32_dpp v{dst + r}, v{src}, v{msk} row_ror:8 row_mask:0xf bank_mask:0xf')
            return out

        def qk(tau, right, p):
            c = '0' if (tau == 0 and not right) else vr(QK + 4 * p, 4)
            b = (MR1 if right else MEM) + 4 * tau
            k(f'v_mfma_f32_16x16x32_bf16 {vr(QK + 4 * p, 4)}, {wqk(p + (3 if right else 0), tau, role < 2)}, {vr(b, 4)}, {c}')

        def cloads():
            k(f'buffer_load_dwordx4 {vr(XR, 4)}, v{V_C}, s[4:7], s{S_CRD} offen sc1')
            k(f'buffer_load_dwordx4 {vr(XR + 4, 4)}, v{V_C}, s[4:7], s{S_CRD} offen offset:1024 sc1')
            k(f'buffer_load_dwordx4 {vr(XR + 8, 4)}, v{V_C3}, s[4:7], s{S_CRD} offen offset:2048 sc1')

        QA, QB, SD = (QK + 4 if role == 0 else 104), 244, 252

        def ystores():
            if role < 3:
                if role == 2:
                    k(f's_mov_b64 exec, s[{M_C8}:{M_C8 + 1}]')
                k(f'buffer_store_dwordx4 {vr(V_YF, 4)}, v{V_UL}, s[4:7], s{S_YG} offen sc1')
                k(f's_mov_b32 s{S_YG}, s{S_YGN}')
                k(f's_add_u32 s{S_YGN}, s{S_YGN}, {8 * 40960}')
                if role == 2:
                    k('s_mov_b64 exec, -1')

        def kmstores():
            k(f's_mov_b64 exec, s[{M_CHI}:{M_CHI + 1}]')
            k(f'buffer_store_dwordx4 {vr(QA, 4)}, v{V_RA}, s[4:7], s{S_KM} offen sc1')
            k(f'buffer_store_dwordx2 {vr(QB, 2)}, v{V_RB}, s[4:7], s{S_KM} offen sc1')
            k(f's_mov_b32 s{S_KM}, s{S_KMN}')
            k(f's_add_u32 s{S_KMN}, s{S_KMN}, {32 * 3072}')
            k('s_mov_b64 exec, -1')

        seq = [(tau, right, p) for tau in range(5) for right in (False, True) for p in range(3)]
        k.label(L)
        k(f's_mov_b32 s{S_SPIN}, 0')
        k('s_mov_b64 exec, -1')
        if OPT['cdelay']:
            k(f's_sleep {OPT["cdelay"]}')
        k.label(L + '_pc')
        cloads()
        for rep in range(OPT['cre']):
            if OPT['csl']:
                k(f's_sleep {OPT["csl"]}')
            k(f'v_max3_u32 v{V_T0}, v{XR}, v{XR + 1}, v{XR + 2}')
            k(f'v_max3_u32 v{V_T1}, v{XR + 3}, v{XR + 4}, v{XR + 5}')
            rest = [
                f'v_max3_u32 v{V_T0}, v{V_T0}, v{XR + 6}, v{XR + 7}',
                f'v_max3_u32 v{V_T1}, v{V_T1}, v{XR + 8}, v{XR + 9}',
                f'v_max3_u32 v{V_T0}, v{V_T0}, v{XR + 10}, v{XR + 11}',
                f'v_max_u32 v{V_T0}, v{V_T0}, v{V_T1}',
                f'v_cmp_eq_u32 vcc, -1, v{V_T0}']
            if OPT['cspec']:
                for ins in split(0, False):
                    k(ins)
                va = split(0, True) + rest
                for n in range(4):
                    qk(*seq[n])
                    for _ in range(2 if n < 3 else 3):
                        if va:
                            k(va.pop(0))
                assert not va
            else:
                for ins in rest:
                    k(ins)
                for ins in split(0, False):
                    k(ins)
            k(f's_cbranch_vccz {L}_pc_ok')
        spin(L + '_pc')
        k.label(L + '_pc_ok')
        stamp(0)
        va = []
        if not OPT['cspec']:
            va = split(0, True)
            for n in range(4):
                qk(*seq[n])
                for _ in range(2):
                    if va:
                        k(va.pop(0))
        for tau in range(1, 5):
            va += split(tau, False) + split(tau, True)
        extra = [f'ds_write_b128 v{V_C}, {vr(XR, 4)} offset:{L_MEM}',
                 f'ds_write_b128 v{V_C}, {vr(XR + 4, 4)} offset:{L_MEM + 1024}',
                 f'ds_write_b128 v{V_C3}, {vr(XR + 8, 4)} offset:{L_MEM + 2048}']
        side = []

        def cap(fn):
            n0 = len(k.items)
            fn()
            out = k.items[n0:]
            del k.items[n0:]
            return out

        def split_vmem(items):
            groups, cur = [], []
            for it in items:
                cur.append(it)
                if isinstance(it, Inst) and it.cls == 'vmem':
                    groups.append(cur)
                    cur = []
            if cur:
                groups[-1] += cur
            return groups

        def refresh():
            lab = k.newlabel('rf')
            if role == 0:
                k(f's_min_u32 s{S_T0}, s{S_URDY}, s{S_KRDY}')
                k(f's_cmp_ge_u32 s{S_T0}, 64')
            else:
                k(f's_cmp_ge_u32 s{S_URDY}, 64')
            k(f's_cbranch_scc1 {lab}')
            k(f'buffer_load_dword v{V_FU}, v{V_FUA}, s[4:7], s{S_FU} offen sc1')
            if role == 0:
                k(f'buffer_load_dword v{V_FK}, v{V_ZERO}, s[4:7], s{S_FK} offen sc1')
            k.label(lab)

        if role < 3:
            side.append(cap(lambda: wait_flag(S_URDY, S_FU, 1, 4)))
            side += split_vmem(cap(lambda: pref_u(False)))
            if role == 0:
                side.append(cap(lambda: wait_flag(S_KRDY, S_FK, 2, 1)))
                side += split_vmem(cap(lambda: pref_kx(2, KN, False)))
            side.append(cap(ystores))
            if role == 1:
                side.append(cap(kmstores))
            side.append(cap(refresh))
        pos0, stp = ((5, 2), (6, 3), (7, 3), (0, 1))[role]
        for n in range(4, 30):
            qk(*seq[n])
            for _ in range(2):
                if va:
                    k(va.pop(0))
            if n in (17, 20, 23):
                k(extra.pop(0))
            if side and n >= pos0 and (n - pos0) % stp == 0:
                k.items += side.pop(0)
        assert not side
        fill = [(0, tt, i) for tt in range(5) for i in range(nti)]

        def F(n):
            for _ in range(n):
                if fill:
                    ymfma(*fill.pop(0))
        F(1)
        for p in range(3):
            k(f'ds_write_b128 v{V_YR}, {vr(QK + 4 * p, 4)} offset:{L_QKP + p * 4096}')
        F(4)
        k('s_waitcnt lgkmcnt(0)')
        k('s_barrier')
        stamp(1)
        RD = [QK, 244, 252 - 0]
        rdl = [QK, QK + 8, 248]
        rdh = [QK + 4, 244, 252]
        if role == 0:
            for p in range(3):
                for h in range(2):
                    k(f'ds_read_b128 {vr((rdl, rdh)[h][p], 4)}, v{V_QKR} offset:{L_QKP + p * 4096 + h * 1024}')
        elif role == 1:
            for p in range(3):
                for h in range(4):
                    d = (rdl, rdh)[h][p] if h < 2 else T + 8 * p + 4 * (h % 2)
                    k(f'ds_read_b128 {vr(d, 4)}, v{V_L16} offset:{L_QKP + p * 4096 + h * 1024}')
        for tt in range(5):
            mread(1, tt)
        F(4)
        if role < 2:
            nr = 2 if role == 0 else 4
            for p in range(3):
                k(f's_waitcnt lgkmcnt({min(15, 5 + nr * (2 - p))})')
                d, d2 = rdl[p], rdh[p]
                k(f'v_pk_add_f32 {vr(d, 2)}, {vr(d, 2)}, {vr(d2, 2)}')
                k(f'v_pk_add_f32 {vr(d + 2, 2)}, {vr(d + 2, 2)}, {vr(d2 + 2, 2)}')
                if role == 0:
                    for r in range(4):
                        k(f'v_add_f32_dpp v{d + r}, v{d + r}, v{d + r} row_ror:8 row_mask:0xf bank_mask:0xf')
                else:
                    e_ = T + 8 * p
                    k(f'v_pk_add_f32 {vr(e_, 2)}, {vr(e_, 2)}, {vr(e_ + 4, 2)}')
                    k(f'v_pk_add_f32 {vr(e_ + 2, 2)}, {vr(e_ + 2, 2)}, {vr(e_ + 6, 2)}')
                    k(f'v_pk_add_f32 {vr(d, 2)}, {vr(d, 2)}, {vr(e_, 2)}')
                    k(f'v_pk_add_f32 {vr(d + 2, 2)}, {vr(d + 2, 2)}, {vr(e_ + 2, 2)}')
                o = (QA, QA + 2, QB)[p]
                k(f'v_cvt_pk_bf16_f32 v{o}, v{d}, v{d + 1}')
                k(f'v_cvt_pk_bf16_f32 v{o + 1}, v{d + 2}, v{d + 3}')
                if p == 1:
                    k(f'v_mfma_f32_16x16x32_bf16 {vr(V_S1, 4)}, {ar(KC, 4) if role == 0 else vr(QA, 4)}, {vr(QA, 4)}, 0')
                    if role == 0:
                        k(f'v_mfma_f32_16x16x32_bf16 {vr(V_S2, 4)}, {ar(KC + 4, 4)}, {vr(QA, 4)}, 0')
            k(f'v_mfma_f32_16x16x16_bf16 {vr(SD, 4)}, {ar(KC + 8, 2) if role == 0 else vr(QB, 2)}, {vr(QB, 2)}, {vr(V_S1, 4)}')
            if role == 0:
                k(f'v_mfma_f32_16x16x16_bf16 {vr(V_SD2, 4)}, {ar(KC + 10, 2)}, {vr(QB, 2)}, {vr(V_S2, 4)}')
                F(1)
            else:
                F(2)
            for r in range(4):
                k(f'v_and_or_b32 v{SD + r}, v{SD + r}, -2, s{S_TAGA}')
            k(f's_mov_b64 exec, s[{M_AST}:{M_AST + 1}]')
            k(f'buffer_store_dwordx4 {vr(SD, 4)}, v{V_AST}, s[4:7], s{S_AST} offen{sc}')
            if role == 0:
                for r in range(4):
                    k(f'v_and_or_b32 v{V_SD2 + r}, v{V_SD2 + r}, -2, s{S_TAGA}')
                k(f'buffer_store_dwordx4 {vr(V_SD2, 4)}, v{V_AST}, s[4:7], s{S_AST} offen offset:64{sc}')
            k('s_mov_b64 exec, -1')
        if role == 1:
            k(f's_cmp_eq_u32 s{S_SEG}, {nsteps - 1}')
            k(f's_cbranch_scc0 {L}_nokm')
            k(f's_mov_b64 exec, s[{M_CHI}:{M_CHI + 1}]')
            k(f'buffer_store_dwordx4 {vr(QA, 4)}, v{V_RA}, s[4:7], s{S_KM} offen sc1')
            k(f'buffer_store_dwordx2 {vr(QB, 2)}, v{V_RB}, s[4:7], s{S_KM} offen sc1')
            k('s_mov_b64 exec, -1')
            k('s_waitcnt vmcnt(0)')
            put_flag(S_FKM, 1)
            k.label(L + '_nokm')
        stamp(2)
        k(f's_xor_b32 s{S_T0}, s{S_TAGA}, 1')
        pois = [f'v_mov_b32 v{T + n}, s{S_T0}' for n in range(20)] if role == 1 else []
        while fill:
            F(1)
            for _ in range(3):
                if pois:
                    k(pois.pop(0))

        def aloads():
            for p in range(4):
                k(f'buffer_load_dwordx4 {vr(T + 4 * p, 4)}, v{V_L16}, s[4:7], s{S_ALD} offen offset:{p * 1280} sc1')
            for p in range(4):
                k(f'buffer_load_dword v{T + 16 + p}, v{V_AMM}, s[4:7], s{S_ALD} offen offset:{p * 1280} sc1')

        def ycvt():
            for i in range(nti):
                k(f'v_cvt_pk_bf16_f32 v{YA + 4 * i}, v{YA + 4 * i}, v{YA + 4 * i + 1}')
                k(f'v_cvt_pk_bf16_f32 v{YA + 4 * i + 1}, v{YA + 4 * i + 2}, v{YA + 4 * i + 3}')

        def ywrite():
            k(f's_mov_b64 exec, s[{M_LO32}:{M_LO32 + 1}]')
            for i in range(nti):
                k(f'ds_write_b64 v{V_YW if i < 2 else V_YG}, {vr(YA + 4 * i, 2)} offset:{L_YOP + i * 1024}')
            k('s_mov_b64 exec, -1')

        glast = 3
        ng = 5 * nti
        ylist = [(gam, tt, i) for gam in range(1, 4) for tt in range(5) for i in range(nti)]
        aat = (OPT['aat0'], OPT['aat0'], OPT['aat'], OPT['aat'])[role]
        assert aat < len(ylist)
        aq = []
        kcopy = [f'v_accvgpr_mov_b32 a{KC + r}, a{KN + r}' for r in range(12)] if role == 0 else []
        for n, (gam, tt, i) in enumerate(ylist):
            if n % ng == 0:
                k('s_waitcnt lgkmcnt(0)')
            ymfma(gam, tt, i)
            if gam < 3 and n % ng < 5:
                mread(gam + 1, n % ng)
            for _ in range(2):
                if pois:
                    k(pois.pop(0))
            if n == aat or (OPT['a2'] and n == len(ylist) - OPT['a2']):
                assert not pois
                aq += split_vmem(cap(aloads))
            if aq:
                k.items += aq.pop(0)
        for g_ in aq:
            k.items += g_
        fill = []
        k(f's_cmp_eq_u32 s{S_SEG}, {nsteps - 1}')
        k(f's_cbranch_scc0 {L}_cont')
        k('s_waitcnt lgkmcnt(0)')
        for f_ in fill:
            ymfma(*f_)
        ycvt()
        ywrite()
        k('s_waitcnt lgkmcnt(0)')
        k('s_barrier')
        k(f'ds_read_b128 {vr(V_YF, 4)}, v{V_YR} offset:{L_YOP}')
        k('s_waitcnt lgkmcnt(0)')
        ystores()
        k('s_waitcnt vmcnt(0)')
        k('s_barrier')
        if role == 1:
            put_flag(S_FY, 1)
        k('s_endpgm')
        k.label(L + '_cont')
        if glast == 3:
            ycvt()
            ywrite()
        stamp(3)
        k.label(L + '_pa')
        for rep in range(OPT['are']):
            for p in range(4):
                k(f'v_bitop3_b32 v{QK + p}, v{T + 4 * p}, v{T + 16 + p}, s{S_TAGA} bitop3:0x7e')
            k(f'v_or3_b32 v{QK + 4}, v{QK}, v{QK + 1}, v{QK + 2}')
            k(f'v_bitop3_b32 v{QK + 4}, v{QK + 4}, v{QK + 3}, 1 bitop3:0xa8')
            k(f'v_cmp_ne_u32 vcc, 0, v{QK + 4}')
            k(f's_cbranch_vccz {L}_pa_ok')
            if OPT['asl']:
                k(f's_sleep {OPT["asl"]}')
        for p in range(4):
            k(f'v_and_b32 v{QK + p}, 1, v{QK + p}')
        for p in range(4):
            k(f'v_cmp_ne_u32 s[{S_STA + 8 + 2 * p if False else 88 + 2 * (p % 2)}:{89 + 2 * (p % 2)}], 0, v{QK + p}')
            k(f's_cmp_eq_u64 s[{88 + 2 * (p % 2)}:{89 + 2 * (p % 2)}], 0')
            k(f's_cbranch_scc1 {L}_pa_s{p}')
            k(f'buffer_load_dwordx4 {vr(T + 4 * p, 4)}, v{V_L16}, s[4:7], s{S_ALD} offen offset:{p * 1280} sc1')
            k(f'buffer_load_dword v{T + 16 + p}, v{V_AMM}, s[4:7], s{S_ALD} offen offset:{p * 1280} sc1')
            k.label(f'{L}_pa_s{p}')
        spin(L + '_pa')
        k.label(L + '_pa_retry')
        aloads()
        spin(L + '_pa')
        k.label(L + '_pa_ok')
        k('s_waitcnt vmcnt(0)')
        stamp(4)
        X = QK + 8
        mx, t1 = X + 5, X + 6
        dpps = ('quad_perm:[1,0,3,2]', 'quad_perm:[2,3,0,1]', 'row_half_mirror')
        sm = [f'v_pk_add_f32 {vr(X, 2)}, {vr(T, 2)}, {vr(T + 4, 2)}',
              f'v_pk_add_f32 {vr(X + 8, 2)}, {vr(T + 8, 2)}, {vr(T + 12, 2)}',
              f'v_pk_add_f32 {vr(X + 2, 2)}, {vr(T + 2, 2)}, {vr(T + 6, 2)}',
              f'v_pk_add_f32 {vr(X + 10, 2)}, {vr(T + 10, 2)}, {vr(T + 14, 2)}',
              f'v_pk_add_f32 {vr(X + 6, 2)}, {vr(T + 16, 2)}, {vr(T + 18, 2)}',
              f'v_pk_add_f32 {vr(X, 2)}, {vr(X, 2)}, {vr(X + 8, 2)}',
              f'v_pk_add_f32 {vr(X + 2, 2)}, {vr(X + 2, 2)}, {vr(X + 10, 2)}',
              f'v_add_f32 v{X + 4}, v{X + 6}, v{X + 7}',
              f'v_max3_f32 v{mx}, v{X}, v{X + 1}, v{X + 2}',
              f'v_max3_f32 v{mx}, v{mx}, v{X + 3}, v{X + 4}', 'F']
        for dp in dpps:
            sm += [f'v_max_f32_dpp v{mx}, v{mx}, v{mx} {dp} row_mask:0xf bank_mask:0xf', 'F']
        sm.pop()
        sm.append(f'v_mul_f32 v{mx}, s{S_SC}, v{mx}')
        sm += [f'v_fma_f32 v{X + r}, v{X + r}, s{S_SC}, -v{mx}' for r in range(5)]
        sm += [f'v_exp_f32 v{X + r}, v{X + r}' for r in range(5)]
        sm += [f'v_add_f32 v{mx}, v{X}, v{X + 1}', f'v_add_f32 v{t1}, v{X + 2}, v{X + 3}',
               f'v_add_f32 v{mx}, v{mx}, v{X + 4}', f'v_add_f32 v{mx}, v{mx}, v{t1}', 'F']
        for dp in dpps:
            sm += [f'v_add_f32_dpp v{mx}, v{mx}, v{mx} {dp} row_mask:0xf bank_mask:0xf', 'F']
        sm.pop()
        sm.append(f'v_rcp_f32 v{mx}, v{mx}')
        sm += [f'v_mul_f32 v{X + r}, v{X + r}, v{mx}' for r in range(5)]
        sm += [f'v_cvt_pk_bf16_f32 v{X}, v{X}, v{X + 1}', f'v_cvt_pk_bf16_f32 v{X + 1}, v{X + 2}, v{X + 3}',
               f'v_cvt_pk_bf16_f32 v{X + 2}, v{X + 4}, v{X + 4}']
        cnt = 0
        for ins in sm:
            if ins == 'F':
                F(1)
                cnt = 0
                continue
            k(ins)
            cnt += 2 if 'v_exp' in ins else 1
            if cnt >= 3:
                F(1)
                cnt = 0
        F(15)
        k(f'ds_write_b64 v{V_PW}, {vr(X, 2)} offset:{L_POP}')
        k(f'ds_write_b16 v{V_PMW}, v{X + 2} offset:{L_POP}')
        tagcheck([T + n for n in range(16) if n % 4], S_TAGA, QK)
        k(f's_cbranch_vccnz {L}_pa_retry')
        if glast == 2:
            ycvt()
            ywrite()
        k('s_waitcnt lgkmcnt(0)')
        k('s_barrier')
        stamp(5)
        if role < 3:
            for ks in range(5):
                k(f'ds_read_b128 {vr(QK + 4 * ks, 4)}, v{V_PR} offset:{L_POP + ks * 1024}')
            k(f'ds_read_b128 {vr(V_YF, 4)}, v{V_YR} offset:{L_YOP}')
            for ks in range(5):
                k(f's_waitcnt lgkmcnt({5 - ks if ks < 4 else 0})')
                a = UF + 4 * ks if ks < 4 else V_YF
                c = '0' if ks == 0 else vr(V_S1, 4)
                k(f'v_mfma_f32_16x16x32_bf16 {vr(V_S1, 4)}, {vr(a, 4)}, {vr(QK + 4 * ks, 4)}, {c}')
            for r in range(4):
                k(f'v_and_or_b32 v{V_S1 + r}, v{V_S1 + r}, -2, s{S_TAGB}')
            k(f's_mov_b64 exec, s[{M_BST}:{M_BST + 1}]')
            k(f'buffer_store_dwordx4 {vr(V_S1, 4)}, v{V_BST}, s[4:7], s{S_BST2} offen sc1')
            k(f'buffer_store_dwordx4 {vr(V_S1, 4)}, v{V_BST}, s[4:7], s{S_BST} offen sc1')
        else:
            k('s_sleep 5')
        stamp(6)
        k('s_mov_b64 exec, -1')
        k(f's_add_u32 s{S_SEG}, s{S_SEG}, 1')
        k(f's_xor_b32 s{S_TAGA}, s{S_TAGA}, 1')
        k(f's_add_u32 s{S_BST}, s{S_BST}, s{S_DB}')
        k(f's_add_u32 s{S_BST2}, s{S_BST2}, s{S_DB}')
        nset = 1
        b = UF
        for ins in kcopy:
            k(ins)
        if role < 3:
            k(f'v_min_u32_dpp v{V_FU}, v{V_FU}, v{V_FU} quad_perm:[1,0,3,2] row_mask:0xf bank_mask:0xf')
            k(f'v_min_u32_dpp v{V_FU}, v{V_FU}, v{V_FU} quad_perm:[2,3,0,1] row_mask:0xf bank_mask:0xf')
            k(f'v_readfirstlane_b32 s{S_T0}, v{V_FU}')
            k(f's_max_u32 s{S_URDY}, s{S_URDY}, s{S_T0}')
        if role == 0:
            k(f'v_readfirstlane_b32 s{S_T0}, v{V_FK}')
            k(f's_max_u32 s{S_KRDY}, s{S_KRDY}, s{S_T0}')
        if role == 1:
            put_flag(S_FKM, -1)
        k(f's_xor_b32 s{S_T0}, s{S_TAGB}, 1')
        for n in range(8 * nset):
            k(f'v_mov_b32 v{b + n}, s{S_T0}')
        for n in range(12):
            k(f'v_mov_b32 v{XR + n}, -1')
        if OPT['bdelay']:
            k(f's_sleep {OPT["bdelay"]}')
        k.label(L + '_pb')
        for st_ in range(nset):
            va_ = V_BLD if st_ == 0 else V_RA
            k(f'buffer_load_dwordx4 {vr(b + 8 * st_, 4)}, v{va_}, s[4:7], s{S_BLD} offen sc1')
            k(f'buffer_load_dwordx4 {vr(b + 8 * st_ + 4, 4)}, v{va_}, s[4:7], s{S_BLD2} offen sc1')
        for rep in range(OPT['bre']):
            if OPT['bsl']:
                k(f's_sleep {OPT["bsl"]}')
            tagcheck(list(range(b, b + 8 * nset)), S_TAGB, QK)
            k(f's_cbranch_vccz {L}_pb_ok')
        spin(L + '_pb')
        k.label(L + '_pb_ok')
        stamp(7)
        for st_ in range(nset):
            y = QK + 4
            k(f'v_pk_add_f32 {vr(y, 2)}, {vr(b + 8 * st_, 2)}, {vr(b + 8 * st_ + 4, 2)}')
            k(f'v_pk_add_f32 {vr(y + 2, 2)}, {vr(b + 8 * st_ + 2, 2)}, {vr(b + 8 * st_ + 6, 2)}')
        for dp in ('row_ror:4', 'row_ror:8'):
            for st_ in range(nset):
                y = QK + 4
                for r in range(4):
                    k(f'v_add_f32_dpp v{y + r}, v{y + r}, v{y + r} {dp} row_mask:0xf bank_mask:0xf')
        for st_ in range(nset):
            y = QK + 4
            k(f'v_cvt_pk_bf16_f32 v{y}, v{y}, v{y + 1}')
            k(f'v_cvt_pk_bf16_f32 v{y + 1}, v{y + 2}, v{y + 3}')
            k(f'v_min_u32 v{y}, -2, v{y}')
            k(f'v_min_u32 v{y + 1}, -2, v{y + 1}')
            if st_ == 0:
                k(f's_mov_b64 exec, s[{M_Q0}:{M_Q0 + 1}]')
            k(f'buffer_store_dwordx2 {vr(y, 2)}, v{V_CST if st_ == 0 else V_RB}, s[4:7], s{S_CWR} offen{sc}')
        k(f'buffer_store_dwordx2 {vr(XR, 2)}, v{V_CST}, s[4:7], s{S_CRD} offen{sc}')
        k(f's_mov_b32 s{S_T0}, s{S_CRD}')
        k(f's_mov_b32 s{S_CRD}, s{S_CWR}')
        k(f's_mov_b32 s{S_CWR}, s{S_CRS}')
        k(f's_mov_b32 s{S_CRS}, s{S_T0}')
        if stamps:
            k('s_mov_b64 exec, -1')
            k('s_waitcnt lgkmcnt(0)')
            for i in range(8):
                k(f'v_writelane_b32 v{V_T0}, s{S_STA + 2 * i}, {i}')
            k(f's_lshl_b32 s{S_T0}, s{S_CU}, 3')
            k(f's_add_u32 s{S_T0}, s{S_T0}, s{S_X}')
            k(f's_lshl_b32 s{S_T0}, s{S_T0}, 2')
            k(f's_add_u32 s{S_T0}, s{S_T0}, s{S_W}')
            k(f's_lshl_b32 s{S_T0}, s{S_T0}, 6')
            k(f's_add_u32 s{S_T0}, s{S_T0}, s{S_SEG}')
            k(f's_lshl_b32 s{S_T0}, s{S_T0}, 5')
            k(f's_add_u32 s{S_T0}, s{S_T0}, {STAMP_OFF - 32}')
            k(f'v_lshlrev_b32 v{V_T1}, 2, v{V_LANE}')
            k('s_mov_b64 exec, 0xff')
            k(f'buffer_store_dword v{V_T0}, v{V_T1}, s[4:7], s{S_T0} offen')
        k(f's_add_u32 s{S_BLD}, s{S_BLD}, s{S_DB}')
        k(f's_add_u32 s{S_BLD2}, s{S_BLD2}, s{S_DB}')
        k(f's_sub_u32 s{S_DB}, 0, s{S_DB}')
        k(f's_lshr_b32 s{S_TAGB}, s{S_SEG}, 1')
        k(f's_and_b32 s{S_TAGB}, s{S_TAGB}, 1')
        k(f's_branch {L}')

    for v in range(8):
        emit_loop(v)
```

```python
S, D, H, E, M, SEG, NS = 2048, 640, 32, 192, 8, 32, 64
KB = 1024
off = 0
def alloc(n, align=4096):
    global off
    off = (off + align - 1) // align * align
    o = off
    off += n
    return o
BP   = alloc(32 * 40 * 20 * KB)
HF   = alloc(128 * 20 * KB)
QKVF = alloc(3 * 128 * 32 * 6 * KB)
QKVF_M = 128 * 32 * 6 * KB
UU   = alloc(64 * 32 * 640 * 64)
YM   = alloc(64 * 8 * 640 * 64)
KM   = alloc(64 * 32 * 6 * 512)
PP   = alloc(64 * 2 * 40 * KB)
X1   = alloc(S * D * 4)
HC_SZ = 4 * 3 * 10240
HA_SZ = 8 * 16 * 1280
HC = [alloc(HC_SZ), alloc(HC_SZ)]
HA = [alloc(HA_SZ), alloc(HA_SZ)]
HB_RES = alloc(4 << 20)
FL_K, FL_V, FL_Q, FL_U, FL_KM, FL_PC, FL_SZ = 0, 4096, 8192, 12288, 16384, 20480, 28672
FL = alloc(4 * 16384)
DIAG = alloc(8 << 20)
NEARW = alloc(64)
WBP  = alloc(8 * 20 * 15 * KB)
WO2P = alloc(40 * 20 * KB)
KVF  = alloc(8 * 6 * 5 * 256)
STB  = alloc(64 * 2 * 20 * 128)
PQ   = QKVF
KVP  = QKVF + QKVF_M
WS_END = off
WS_BYTES = 268435456
assert WS_END <= WS_BYTES, WS_END

def fmap(f, g, j):
    if f < 4:
        return 48 * f + (0 if j < 4 else 16) + 4 * g + (j & 3)
    base = 32 + 96 * (f - 4) + (0 if j < 4 else 48)
    return base + 4 * g + (j & 3)

def keymap(g, j):
    return (0 if j < 4 else 16) + 4 * g + (j & 3)
if __name__ == '__main__':
    print(WS_END, WS_BYTES)
```

```python
import sys
from gen_common import *
import k_prep, k_rec2 as k_rec, k_b, k_mega

HEADER = open('interleave_layers__memory_aug_recurrent_mem_tr__linear_kernel_hedgehog__prompt.s.ref').read().split('; Override')[0].rstrip('\n').split('\n')
STAMPS = '--stamps' in sys.argv
OUT = sys.argv[sys.argv.index('-o') + 1] if '-o' in sys.argv else 'dev.s'
for a in sys.argv:
    if '=' in a:
        kk, vv = a.split('=')
        k_rec.OPT[kk] = int(vv)

k_b.PH = '--ph' in sys.argv

def main(out):
    kernels = {}
    launches = []
    def add(res, block=256):
        if len(res) == 2:
            res = res + (0,)
        k, g, l = res
        kernels.setdefault(k.name, k)
        launches.append((k.name, g, block, l))
    add(k_prep.make_prep())
    m = k_mega.make_mega(stamps=STAMPS)
    for layer in range(2):
        add((m[layer], 256, k_mega.LDS_BYTES))
        if layer == 0:
            kernels[m[1].name] = m[1]
        add(k_b.make_b1(), 320)
        add(k_b.make_bred())
        add(k_b.make_b2(layer == 1), 320)
    if '--xstamps' in sys.argv:
        for i, nm in enumerate(('prep_kernel', 'b1_kernel', 'bred_kernel', 'b2_kernel')):
            kernels[nm].add_exit_stamps(DIAG + (i << 20))
    txt = build_file(HEADER, launches, list(kernels.values()))
    open(out, 'w').write(txt)
    for k in kernels.values():
        print(k.name, 'vgpr/agpr/sgpr/insts', k.stats)
    print(len(txt), 'bytes')

if __name__ == '__main__':
    main(OUT)
```

```python
import re

_REG_RE = re.compile(r'^(-|abs\(|\|)?([vas])(\d+|\[(\d+):(\d+)\])\)?\|?$')


def parse_reg(tok):
    tok = tok.strip()
    if tok in ('vcc',):
        return [('s', 'vcc')]
    if tok in ('vcc_lo', 'vcc_hi'):
        return [('s', 'vcc')]
    if tok in ('exec', 'exec_lo', 'exec_hi'):
        return [('s', 'exec')]
    if tok == 'm0':
        return [('s', 'm0')]
    t = tok
    if t.startswith('-'):
        t = t[1:]
    if t.startswith('abs('):
        t = t[4:-1]
    if t.startswith('|'):
        t = t.strip('|')
    m = re.match(r'^([vas])(\d+)$', t)
    if m:
        return [(m.group(1), int(m.group(2)))]
    m = re.match(r'^([vas])\[(\d+):(\d+)\]$', t)
    if m:
        return [(m.group(1), i) for i in range(int(m.group(2)), int(m.group(3)) + 1)]
    return []


TRANS = ('v_exp_f32', 'v_log_f32', 'v_rcp_f32', 'v_rsq_f32', 'v_sqrt_f32', 'v_sin_f32', 'v_cos_f32',
         'v_rcp_iflag_f32', 'v_exp_f16', 'v_rcp_f16')
RMW_DST = ('v_fmac_f32', 'v_dot2c_f32_bf16', 'v_pk_fmac_f16', 'v_fmac_f32_e32', 'v_fmac_f32_e64', 'v_fmac_f32_dpp',
           'v_dot2c_f32_bf16_e32', 'v_writelane_b32')


class Inst:
    __slots__ = ('text', 'mn', 'ops', 'mods', 'cls', 'wr', 'rd', 'passes', 'dpp', 'srcA', 'srcB', 'srcC', 'target',
                 'nops', 'store_data', 'wide_store', 'lanesel', 'ldsdma')

    def __init__(self, text):
        self.text = text
        body = text.split(';')[0].strip()
        parts = body.split(None, 1)
        self.mn = mn = parts[0]
        rest = parts[1] if len(parts) > 1 else ''
        ops = []
        cur = ''
        depth = 0
        for ch in rest:
            if ch in '[(':
                depth += 1
            if ch in '])':
                depth -= 1
            if ch == ',' and depth == 0:
                ops.append(cur.strip())
                cur = ''
            else:
                cur += ch
        mods = ''
        if cur.strip():
            c = cur.strip()
            sp = c.split(None, 1)
            ops.append(sp[0])
            if len(sp) > 1:
                mods = sp[1]
        self.ops = ops
        self.mods = mods
        self.wr = set()
        self.rd = set()
        self.passes = 0
        self.dpp = False
        self.srcA = self.srcB = self.srcC = set()
        self.target = None
        self.nops = 1
        self.store_data = set()
        self.wide_store = False
        self.lanesel = set()
        self.ldsdma = False
        R = lambda i: set(parse_reg(ops[i])) if i < len(ops) else set()
        allr = lambda lo: set().union(*[R(i) for i in range(lo, len(ops))]) if len(ops) > lo else set()
        if mn.startswith('v_mfma') or mn.startswith('v_smfmac'):
            self.cls = 'mfma'
            self.wr = R(0)
            self.srcA, self.srcB, self.srcC = R(1), R(2), R(3)
            if mn.startswith('v_smfmac'):
                self.srcB = self.srcB | self.srcC
                self.srcC = R(0)
            self.rd = self.srcA | self.srcB | self.srcC
            if '32x32' in mn:
                self.passes = 8
            elif '16x16' in mn:
                self.passes = 4
            elif '4x4' in mn:
                self.passes = 2
            if mn in ('v_mfma_f32_32x32x2_f32',):
                self.passes = 16
            if mn in ('v_mfma_f32_16x16x4_f32',):
                self.passes = 8
            assert not mn.endswith('_f32_f32'), 'sgemm rules not modelled'
        elif mn.startswith('v_'):
            self.cls = 'valu'
            base = mn
            self.dpp = ('_dpp' in mn) or any(k in mods for k in ('quad_perm', 'row_shr', 'row_shl', 'row_ror',
                                                                   'row_mirror', 'row_half_mirror', 'row_bcast',
                                                                   'wave_', 'row_newbcast'))
            if mn.startswith('v_cmpx'):
                self.wr = R(0) | {('s', 'exec')}
                self.rd = allr(1)
            elif mn.startswith('v_cmp'):
                self.wr = R(0)
                self.rd = allr(1)
            elif mn.startswith('v_permlane') and 'swap' in mn:
                self.wr = R(0) | R(1)
                self.rd = R(0) | R(1)
            elif mn.startswith('v_swap'):
                self.wr = R(0) | R(1)
                self.rd = R(0) | R(1)
            elif mn.startswith(('v_add_co', 'v_sub_co', 'v_subrev_co', 'v_addc_co', 'v_subb_co', 'v_div_scale',
                                'v_mad_u64_u32', 'v_mad_i64_i32')):
                self.wr = R(0) | R(1)
                self.rd = allr(2)
            elif mn.startswith(('v_readlane', 'v_readfirstlane')):
                self.wr = R(0)
                self.rd = allr(1)
                if mn.startswith('v_readlane'):
                    self.lanesel = R(2)
            elif mn == 'v_nop':
                pass
            else:
                self.wr = R(0)
                self.rd = allr(1)
                if mn in RMW_DST or mn.startswith('v_fmac') or mn.startswith('v_dot2c'):
                    self.rd |= R(0)
                if mn.startswith('v_writelane'):
                    self.lanesel = R(2)
                if self.dpp:
                    self.rd |= R(0)
                if mn.startswith('v_cndmask') and len(ops) == 3:
                    self.rd |= {('s', 'vcc')}
                if mn.startswith('v_div_fmas'):
                    self.rd |= {('s', 'vcc')}
        elif mn.startswith(('buffer_', 'global_', 'flat_', 'scratch_')):
            self.cls = 'vmem'
            words = mods.split()
            is_lds = ('lds' in words) or ('_lds_' in mn)
            if 'store' in mn:
                self.rd = allr(0)
                if mn.startswith('buffer_'):
                    self.store_data = R(0)
                else:
                    self.store_data = R(1)
                self.wide_store = mn.endswith(('x3', 'x4'))
            elif 'atomic' in mn:
                self.rd = allr(0)
                if 'sc0' in words:
                    self.wr = R(0)
            elif mn in ('buffer_inv', 'buffer_wbl2'):
                pass
            elif is_lds:
                self.ldsdma = True
                self.rd = allr(0) | {('s', 'm0')}
            else:
                self.wr = R(0)
                self.rd = allr(1)
        elif mn.startswith('ds_'):
            self.cls = 'ds'
            if mn.startswith(('ds_write', 'ds_add_f32', 'ds_add_u32', 'ds_or_b32', 'ds_max', 'ds_min')) and 'rtn' not in mn:
                self.rd = allr(0)
            else:
                self.wr = R(0)
                self.rd = allr(1)
        elif mn.startswith('s_'):
            self.cls = 'salu'
            if mn == 's_nop':
                self.nops = int(ops[0], 0) + 1
            elif mn.startswith(('s_branch', 's_cbranch')):
                self.cls = 'branch'
                self.target = ops[0]
                if 'vcc' in mn:
                    self.rd = {('s', 'vcc')}
                if 'exec' in mn:
                    self.rd = {('s', 'exec')}
            elif mn.startswith(('s_waitcnt', 's_barrier', 's_endpgm', 's_sleep', 's_setprio', 's_sethalt')):
                pass
            elif mn.startswith(('s_cmp', 's_bitcmp')):
                self.rd = allr(0)
            elif mn.startswith(('s_load', 's_buffer_load', 's_memtime', 's_memrealtime', 's_atomic')):
                self.cls = 'smem'
                self.wr = R(0)
                self.rd = allr(1)
            elif 'saveexec' in mn:
                self.wr = R(0) | {('s', 'exec')}
                self.rd = allr(1) | {('s', 'exec')}
            else:
                self.wr = R(0)
                self.rd = allr(1)
        else:
            raise ValueError('unknown instruction: ' + text)


class Label:
    def __init__(self, name):
        self.name = name


MAXAGE = 24


def _isv(r):
    return r[0] in ('v', 'a')


def required(prev_events, ins):
    need = 0
    for age, p in prev_events:
        req = 0
        pw = p.wr
        if p.cls == 'valu':
            pv = {r for r in pw if _isv(r)}
            ps = {r for r in pw if r[0] == 's'}
            if ins.cls == 'mfma' and (pv & ins.rd):
                req = max(req, 2)
            if ins.cls == 'mfma' and ('s', 'exec') in ps:
                req = max(req, 4)
            if ins.cls == 'valu':
                if ins.dpp and (pv & ins.rd):
                    req = max(req, 2)
                if ins.dpp and ('s', 'exec') in ps:
                    req = max(req, 5)
                if ins.mn.startswith(('v_readlane', 'v_readfirstlane')) and (pv & ins.rd):
                    req = max(req, 1)
                if ins.mn.startswith('v_permlane') and (pv & ins.rd):
                    req = max(req, 2)
                if ins.mn.startswith('v_permlane') and ('s', 'exec') in ps:
                    req = max(req, 4)
                if p.mn.split('_e')[0] in TRANS or p.mn in TRANS:
                    if (pv & ins.rd) and not (ins.mn in TRANS):
                        req = max(req, 1)
                if ps & ins.rd:
                    req = max(req, 2)
                if ps & ins.lanesel:
                    req = max(req, 4)
                if ('s', 'exec') in ps and ins.mn.startswith(('v_readlane', 'v_readfirstlane', 'v_writelane')):
                    req = max(req, 4)
                if ins.mn.startswith('v_div_fmas') and ('s', 'vcc') in ps:
                    req = max(req, 4)
                if ('sdwa' in p.mn or 'op_sel' in p.mods or 'dst_sel' in p.mods) and (pv & (ins.rd | ins.wr)):
                    req = max(req, 1)
            if ins.cls == 'vmem' and (ps & ins.rd):
                req = max(req, 5)
            if p.mn in TRANS and ins.cls in ('vmem', 'ds', 'mfma') and (pv & ins.rd):
                req = max(req, 1 if ins.cls != 'mfma' else 2)
            if ins.cls in ('salu', 'branch', 'smem') and (ps & ins.rd):
                req = max(req, 1)
        elif p.cls == 'mfma':
            n = p.passes
            big = {2: 5, 4: 8, 8: 12, 16: 20}[n]
            ovl = {2: 4, 4: 6, 8: 10, 16: 18}[n]
            war = {2: 1, 4: 3, 8: 7, 16: 15}[n]
            if ins.cls == 'mfma':
                if pw & (ins.srcA | ins.srcB):
                    req = max(req, big)
                if pw & ins.srcC:
                    if pw == ins.srcC and ins.mn == p.mn:
                        req = max(req, 2 if n == 2 else 0)
                    else:
                        req = max(req, ovl)
                elif pw & ins.wr:
                    req = max(req, ovl)
            elif ins.cls in ('valu', 'vmem', 'ds'):
                if pw & (ins.rd | ins.wr):
                    req = max(req, big)
                if ins.cls == 'valu' and (p.srcC & ins.wr):
                    req = max(req, war)
                if ins.cls in ('vmem', 'ds') and (p.srcC & ins.wr):
                    req = max(req, war)
        elif p.cls == 'salu':
            if ('s', 'm0') in pw and (ins.ldsdma or 'addtid' in ins.mn or ins.mn.startswith('s_movrel')):
                req = max(req, 1)
        elif p.cls == 'vmem':
            if p.wide_store and (p.store_data & ins.wr):
                req = max(req, 2 if ins.cls == 'valu' else 1)
        if req > age:
            need = max(need, req - age)
    return need


class Kernel:
    def __init__(self, name, vgpr=256, agpr=0, sgpr=102, wgid_y=False):
        self.name = name
        self.items = []
        self.vgpr = vgpr
        self.agpr = agpr
        self.sgpr = sgpr
        self.wgid_y = wgid_y
        self._lab = 0

    def __call__(self, text):
        for line in text.split('\n'):
            line = line.strip()
            if not line or line.startswith(';'):
                continue
            if line.endswith(':') and ' ' not in line:
                self.items.append(Label(line[:-1]))
            else:
                self.items.append(Inst(line))

    def label(self, name):
        self.items.append(Label(name))

    def capture(self, fn):
        n0 = len(self.items)
        fn()
        out = self.items[n0:]
        del self.items[n0:]
        return out

    def defer(self, fn):
        self.deferred = getattr(self, 'deferred', []) + self.capture(fn)

    def flush_deferred(self):
        self.items += getattr(self, 'deferred', [])
        self.deferred = []

    def newlabel(self, base='L'):
        self._lab += 1
        return f'{self.name}_{base}{self._lab}'

    def add_exit_stamps(self, base):
        pre = [Inst(t) for t in ('v_lshrrev_b32 v1, 6, v0', 'v_readfirstlane_b32 s100, v1', 's_lshl_b32 s101, s2, 3',
                                 's_add_u32 s100, s100, s101', 's_lshl_b32 s100, s100, 3',
                                 f's_add_u32 s100, s100, {base}', 's_memrealtime s[96:97]')]
        post = ('s_memrealtime s[98:99]', 's_waitcnt lgkmcnt(0)', 's_mov_b64 exec, 1', 'v_mov_b32 v2, s96',
                'v_mov_b32 v3, s98', 'v_mov_b32 v4, 0', 'buffer_store_dwordx2 v[2:3], v4, s[4:7], s100 offen')
        out = pre
        for it in self.items:
            if isinstance(it, Inst) and it.mn == 's_endpgm':
                out += [Inst(t) for t in post]
            out.append(it)
        self.items = out

    def _hazard_pass(self):
        items = self.items
        changed = True
        rounds = 0
        while changed:
            changed = False
            rounds += 1
            assert rounds < 50
            labpos = {it.name: i for i, it in enumerate(items) if isinstance(it, Label)}
            n = len(items)
            state_in = [None] * (n + 1)
            state_in[0] = {}
            work = [0]
            inserts = {}
            while work:
                i = work.pop()
                st = state_in[i]
                while i < n:
                    it = items[i]
                    if isinstance(it, Label):
                        nxt = st
                    else:
                        need = required([(a, p) for a, p, _ in st.values()], it)
                        if need > 0:
                            inserts[i] = max(inserts.get(i, 0), need)
                        adv = it.nops + max(need, 0)
                        nxt = {}
                        for k, (age, p, nm) in st.items():
                            a2 = age + adv
                            if it.cls == 'mfma' and p.cls == 'mfma' and p.passes == 4 and it.passes == 4:
                                nm += 1
                                a2 = max(a2, 4 * nm - 1)
                            if a2 < MAXAGE:
                                nxt[k] = (a2, p, nm)
                        if it.cls in ('valu', 'mfma', 'vmem') or (it.cls == 'salu' and ('s', 'm0') in it.wr):
                            nxt[id(it)] = (0, it, 0)
                        if it.cls == 'branch':
                            t = labpos.get(it.target)
                            if t is not None and self._merge(state_in, t, nxt):
                                work.append(t)
                            if it.mn == 's_branch':
                                break
                        if it.mn == 's_endpgm':
                            break
                    i += 1
                    if not self._merge(state_in, i, nxt):
                        break
                    st = state_in[i]
            if inserts:
                changed = True
                new = []
                for i, it in enumerate(items):
                    if i in inserts:
                        k = inserts[i]
                        while k > 0:
                            c = min(k, 16)
                            new.append(Inst(f's_nop {c - 1}'))
                            k -= c
                    new.append(it)
                items = new
        self.items = items

    @staticmethod
    def _merge(state_in, i, st):
        cur = state_in[i]
        if cur is None:
            state_in[i] = dict(st)
            return True
        ch = False
        for k, (age, p, nm) in st.items():
            if k not in cur:
                cur[k] = (age, p, nm)
                ch = True
            elif cur[k][0] > age or cur[k][2] > nm:
                cur[k] = (min(age, cur[k][0]), p, min(nm, cur[k][2]))
                ch = True
        return ch

    def check_regs(self):
        mv = ma = ms = -1
        for it in self.items:
            if isinstance(it, Inst):
                for r in it.rd | it.wr:
                    if r[0] == 'v':
                        mv = max(mv, r[1])
                    elif r[0] == 'a':
                        ma = max(ma, r[1])
                    elif r[0] == 's' and isinstance(r[1], int):
                        ms = max(ms, r[1])
        return mv + 1, ma + 1, ms + 1

    def finish(self):
        self._hazard_pass()
        nv, na, ns = self.check_regs()
        acc_off = max(4, (nv + 3) // 4 * 4)
        if self.vgpr:
            acc_off = max(acc_off, min(256, (self.vgpr + 3) // 4 * 4))
        na = max(na, self.agpr)
        assert acc_off <= 256 and na <= 256 and ns <= 102, (nv, na, ns)
        nfv = acc_off + na if na else max(nv, self.vgpr or 0)
        out = [f'.globl {self.name}', '.p2align 8', f'.type {self.name},@function', f'{self.name}:']
        for it in self.items:
            if isinstance(it, Label):
                out.append(f'{it.name}:')
            else:
                out.append('  ' + it.text)
        text = '\n'.join(out) + '\n'
        kd = f'''.section .rodata,"a"
.p2align 6
.amdhsa_kernel {self.name}
  .amdhsa_next_free_vgpr {nfv}
  .amdhsa_next_free_sgpr {max(ns, 16)}
  .amdhsa_accum_offset {acc_off}
  .amdhsa_group_segment_fixed_size 0
  .amdhsa_kernarg_size 112
  .amdhsa_user_sgpr_count 2
  .amdhsa_user_sgpr_kernarg_segment_ptr 1
  .amdhsa_system_sgpr_workgroup_id_x 1
{"  .amdhsa_system_sgpr_workgroup_id_y 1" + chr(10) if self.wgid_y else ""}  .amdhsa_float_denorm_mode_32 3
.end_amdhsa_kernel
.text
'''
        self.stats = (nv, na, ns, sum(isinstance(i, Inst) for i in self.items))
        return text, kd


def build_file(header_lines, launches, kernels):
    out = list(header_lines)
    for k, g, b, lds in launches:
        out.append(f'; @launch kernel={k} grid=({g},1,1) block=({b},1,1) lds={lds}')
    out.append('.amdgcn_target "amdgcn-amd-amdhsa--gfx950"')
    out.append('.text')
    kds = []
    for k in kernels:
        t, kd = k.finish()
        out.append(t)
        kds.append(kd)
    out.extend(kds)
    return '\n'.join(out) + '\n'
```

```python
from gen_common import *
import k_rec2 as k_rec, k_prep
from k_rec2 import OPT, S_LAYER, S_FL, S_PX, S_DBG, S_SLOW, SPIN_MAX, census_post, census_wait
from k_attn import SCALE_L2E, NEG

NAME = 'mega'
L_Q = 122880
LDS_BYTES = 163840
S_WSRD, S_WSRD2, M_60 = 92, 96, 82
S_HEAD, S_KIND, S_WG = 80, 81, 79
S_XS = 84


STAMPS = False
ST2 = DIAG + (4 << 20)
FL_P = FL_Q


def wstamp(k, idx):
    if not STAMPS:
        return
    lab = k.newlabel('ws')
    k('s_cmp_lg_u32 s3, 0')
    k(f's_cbranch_scc1 {lab}')
    k('s_memrealtime s[88:89]')
    k(f's_lshl_b32 s90, s{S_WG}, 6')
    k(f's_add_u32 s90, s90, {ST2 + 4 * idx}')
    k('s_waitcnt lgkmcnt(0)')
    k('v_mov_b32 v250, s88')
    k('v_mov_b32 v251, 0')
    k('s_mov_b64 exec, 1')
    k('buffer_store_dword v250, v251, s[4:7], s90 offen')
    k('s_mov_b64 exec, -1')
    k.label(lab)


def put_flag(k, sval, sflag, vt, vzero):
    lab = k.newlabel('pf')
    k(f'v_mov_b32 v{vt}, s{sval}')
    k('s_mov_b64 exec, 1')
    k(f's_cmp_lg_u32 s{S_SLOW}, 0')
    k(f's_cbranch_scc1 {lab}')
    k(f'buffer_store_dword v{vt}, v{vzero}, s[4:7], s{sflag} offen')
    k.label(lab + '_b')
    k('s_mov_b64 exec, -1')

    def slow():
        k.label(lab)
        k('buffer_wbl2 sc1')
        k('s_waitcnt vmcnt(0)')
        k(f'buffer_store_dword v{vt}, v{vzero}, s[4:7], s{sflag} offen sc1')
        k(f's_branch {lab}_b')
    k.defer(slow)


def ffrag_loads(dst, sbase, st1, st2, vl16):
    out = []
    for mt in range(2):
        for f in range(4):
            out.append(f'buffer_load_dwordx4 {vr(dst + (mt * 6 + f) * 4, 4)}, v{vl16}, s[4:7], s{sbase if mt == 0 else st1} offen offset:{f * 1024} sc1')
        for sl in range(4):
            out.append(f'buffer_load_dwordx2 {vr(dst + (mt * 6 + 4) * 4 + 2 * sl, 2)}, v{vl16}, s[4:7], s{st2} offen offset:{sl * 1024 + mt * 8} sc1')
    return out


def ring_adv(k, sslot, n=1):
    k(f's_add_u32 s{sslot}, s{sslot}, {n * RS}')
    k(f's_cmp_ge_u32 s{sslot}, {RD * RS}')
    k(f's_cselect_b32 s{sslot}, 0, s{sslot}') if n == 1 else None
    if n > 1:
        k(f's_cselect_b32 s30, {RD * RS}, 0')
        k(f's_sub_u32 s{sslot}, s{sslot}, s30')


def poll_vec(k, vaddr, vbias, sneed, vt, slp=2, first=True):
    lab = k.newlabel('pv')
    k('s_mov_b32 s30, 0')
    if not first:
        k(f's_branch {lab}_t')
    k.label(lab)
    k(f'buffer_load_dword v{vt}, v{vaddr}, s[4:7], s{S_FL} offen sc1')
    k('s_waitcnt vmcnt(0)')
    k.label(lab + '_t')
    if vbias is not None:
        k(f'v_add_u32 v{vt}, v{vt}, v{vbias}')
    k(f'v_cmp_gt_u32 vcc, s{sneed}, v{vt}')
    k(f's_cbranch_vccz {lab}_ok')
    k(f's_sleep {slp}')
    k('s_add_u32 s30, s30, 1')
    k(f's_cmp_lt_u32 s30, {SPIN_MAX}')
    k(f's_cbranch_scc1 {lab}')
    k(f's_branch {NAME}_fail')
    k.label(lab + '_ok')


def emit_wo_stage(k, srd, m60, rowbytes, ntiles, ring):
    st = Stager(k, srd, 16, 17, 10, 11, 19, m60, 1280, rowbytes, 192, ring)
    st.issue_upto(0)
    for rho in range(12):
        b, pos = rho // 3, rho % 3
        f, h = (b, pos) if pos < 2 else (4 + (b >> 1), b & 1)
        st.wait_rows(16 * (rho + 1))
        for nt in range(ntiles):
            st.tread(ar((nt * 6 + f) * 4 + 2 * h, 2), 16 * rho, 32 * nt)
        if st.issued < st.n:
            k('s_waitcnt lgkmcnt(0)')
            st.issue_upto(16 * (rho + 1))
    k('s_waitcnt lgkmcnt(0)')


S_RB = 78
DL = RD
D2 = RD + 3


def emit_proj(k, isq):
    pfx = f'{NAME}_q' if isq else f'{NAME}_kv'
    k('v_lshlrev_b32 v2, 4, v1')
    k('v_mov_b32 v7, 0')
    k(f's_mul_i32 s10, s{S_HEAD}, 384')
    k('s_mul_i32 s11, s3, 96')
    k('s_add_u32 s10, s10, s11')
    k('s_mul_i32 s11, s3, 30720')
    k('s_add_u32 s11, s11, 40960')
    stage_setup(k, 16, 17, 1, 12288, 96, 18, 8)
    k('v_add_u32 v17, s11, v17')
    k('s_mul_i32 s13, s3, 10240')
    k(f's_add_u32 s12, s13, {HF}')
    k('s_lshl_b32 s15, s3, 10')
    k('v_add_u32 v3, s15, v2')
    k(f's_and_b32 s9, s{S_HEAD}, 3')

    def dma_l():
        out = []
        for i in range(10):
            pre = []
            if i % 4 == 0:
                pre = [f's_add_u32 m0, s13, {i * 1024}', f's_add_u32 s18, s12, {i * 1024}']
            out.append(pre + [f'buffer_load_dwordx4 v2, s[4:7], s18 offen offset:{(i % 4) * 1024} lds'])
        return out

    if isq:
        for _ in range(OPT.get('qdelay', 2)):
            k('s_sleep 100')
    for g_ in dma_l():
        for ins in g_:
            k(ins)
    k('s_add_u32 s12, s12, 40960')
    k('s_add_u32 s13, s13, 40960')
    k('s_mov_b32 s19, 40960')
    st = Stager(k, S_WSRD, 16, 17, 10, 11, 19, M_60, 12288, 96, 640, 320)
    st.issue_upto(0)
    for t in range(20):
        st.wait_rows(32 * (t + 1))
        for i in range(3):
            for h in range(2):
                st.tread(ar((i * 20 + t) * 4 + 2 * h, 2), 32 * t + 4 * h, 32 * i)
        if st.issued < st.n:
            k('s_waitcnt lgkmcnt(0)')
            st.issue_upto(32 * (t + 1))
    k('s_waitcnt lgkmcnt(0)')
    census_wait(k, NAME, 16, 26, 27, 28)
    k('v_mov_b32 v5, v2')
    wstamp(k, 1)
    FR, ACC, OUT, PD = 16, 48, 72, 3
    k('s_mov_b32 s24, 0')

    def rd(t, mt):
        idx = t * 2 + mt
        k(f'ds_read_b128 {vr(FR + (idx % 8) * 4, 4)}, v5 offset:{mt * 20480 + t * 1024}')

    def seg_body(extra=(), late=(), span=14):
        k('s_barrier')
        for t in range(PD):
            rd(t, 0)
            rd(t, 1)
        dm, ex = dma_l(), [[x] if isinstance(x, str) else list(x) for x in extra]
        side = []
        while dm or ex:
            if dm and len(dm) * (len(extra) + 1) >= len(ex) * 10:
                side.append(dm.pop(0))
            else:
                side.append(ex.pop(0))
        nslot = span * 4
        pos = {}
        for n, g_ in enumerate(side):
            pos.setdefault(n * nslot // len(side), []).append(g_)
        for n, g_ in enumerate(late):
            pos.setdefault(nslot + n, []).append([g_] if isinstance(g_, str) else list(g_))
        for t in range(20):
            k(f's_waitcnt lgkmcnt({2 * min(PD - 1, 19 - t)})')
            for mt in range(2):
                fr = FR + ((t * 2 + mt) % 8) * 4
                for i in range(3):
                    d = ACC + (mt * 3 + i) * 4
                    c = '0' if t == 0 else vr(d, 4)
                    k(f'v_mfma_f32_16x16x32_bf16 {vr(d, 4)}, {ar((i * 20 + t) * 4, 4)}, {vr(fr, 4)}, {c}')
                    if i == 0:
                        if t + PD < 20:
                            rd(t + PD, mt)
                    else:
                        for g_ in pos.pop(t * 4 + mt * 2 + i - 1, []):
                            for ins in g_:
                                k(ins)
        assert not pos
        k('v_add_u32 v5, s19, v5')
        k('s_sub_u32 s13, s13, s19')
        k('s_sub_u32 s19, 0, s19')
        k('s_add_u32 s12, s12, 40960')
        k('s_add_u32 s24, s24, 1')

    if not isq:
        k('v_add_u32 v4, 4096, v3')
        k('v_add_u32 v9, 8192, v3')
        k(f's_mul_i32 s14, s{S_KIND}, {R_V - R_K}')
        k('s_mul_i32 s15, s9, 12288')
        k('s_add_u32 s14, s14, s15')
        k(f's_add_u32 s14, s14, s{S_RB}')
        k(f's_add_u32 s14, s14, {R_K}')
        k('s_mov_b32 s20, 0')
        k(f's_lshl_b32 s25, s{S_KIND}, 12')
        k(f's_lshl_b32 s15, s{S_HEAD}, 7')
        k('s_add_u32 s25, s25, s15')
        k('s_lshl_b32 s15, s3, 2')
        k('s_add_u32 s25, s25, s15')
        k(f's_add_u32 s25, s25, s{S_FL}')

        def epilogue():
            k('s_add_u32 s15, s14, s20')
            for mt in range(2):
                a = lambda i, r: ACC + (mt * 3 + i) * 4 + r
                for i in range(3):
                    o = OUT + 4 * mt + 2 * i if i < 2 else OUT + 8 + 2 * mt
                    k(f'v_cvt_pk_bf16_f32 v{o}, v{a(i, 0)}, v{a(i, 1)}')
                    k(f'v_cvt_pk_bf16_f32 v{o + 1}, v{a(i, 2)}, v{a(i, 3)}')
                k(f'buffer_store_dwordx4 {vr(OUT + 4 * mt, 4)}, v{3 + mt}, s[4:7], s15 offen')
            k(f'buffer_store_dwordx4 {vr(OUT + 8, 4)}, v9, s[4:7], s15 offen')

        def publish():
            k('s_waitcnt vmcnt(0)')
            put_flag(k, 24, 25, 8, 7)
            ring_adv(k, 20)

        k(f's_mul_i32 s15, s{S_KIND}, 3')
        k('s_add_u32 s15, s15, s3')
        k(f's_lshl_b32 s16, s{S_KIND}, 1')
        k('s_add_u32 s16, s16, 3')
        k('s_mul_i32 s26, s9, 5')
        k('s_add_u32 s26, s26, s15')
        k('s_cmp_lt_u32 s15, s16')
        k(f's_cselect_b32 s21, {DL}, 64')
        k('s_cselect_b32 s22, 1, 0')
        k('s_lshl_b32 s16, s9, 3')
        k('s_add_u32 s16, s16, s15')
        k('s_cmp_eq_u32 s16, 6')
        k('s_cselect_b32 s27, 4, s9')
        k('s_cselect_b32 s15, 5, s15')
        k('s_cmp_eq_u32 s15, 5')
        k(f's_cselect_b32 s21, {D2}, s21')
        k('s_cselect_b32 s22, 2, s22')
        if OPT.get('notout'):
            k('s_mov_b32 s22, 0')
        k.label(f'{pfx}_loop')
        seg_body()
        epilogue()
        publish()
        if STAMPS:
            k('s_cmp_eq_u32 s24, 1')
            k(f's_cbranch_scc0 {pfx}_nst')
            wstamp(k, 8)
            k.label(f'{pfx}_nst')
        k('s_cmp_lt_u32 s24, s21')
        k(f's_cbranch_scc1 {pfx}_loop')
        k('s_cmp_eq_u32 s22, 2')
        k(f's_cbranch_scc1 {pfx}_red')
        k('s_cmp_eq_u32 s22, 1')
        k(f's_cbranch_scc1 {pfx}_tout')
        k('s_endpgm')
        k.label(f'{pfx}_tout')
        AFR, PFR, TACC, TO, VA, VF, VF2, VB, VC, VO1 = 96, 136, 176, 192, 10, 11, 12, 13, 14, 15
        k('v_and_b32 v84, 15, v1')
        k('v_lshrrev_b32 v85, 2, v84')
        k('v_lshlrev_b32 v85, 3, v85')
        k('v_and_b32 v86, 3, v1')
        k('v_add_u32 v85, v85, v86')
        k('v_lshlrev_b32 v85, 6, v85')
        k('v_lshrrev_b32 v87, 4, v1')
        k(f'v_lshl_add_u32 v{VA}, v87, 4, v85')
        k(f'v_add_u32 v{VO1}, 20480, v2')
        k('v_lshrrev_b32 v85, 2, v84')
        k('v_lshlrev_b32 v85, 7, v85')
        k('v_lshl_add_u32 v85, v86, 2, v85')
        k(f's_lshl_b32 s15, s{S_PX}, 9')
        k('v_add_u32 v85, s15, v85')
        k(f'v_add_u32 v86, {FL_P}, v85')
        k(f'v_add_u32 v87, {FL_KM + 16}, v85')
        k(f's_lshl_b32 s15, s{S_HEAD}, 7')
        k(f's_add_u32 s15, s15, {FL_KM}')
        k('v_mov_b32 v85, s15')
        k('v_cmp_gt_u32 vcc, 16, v1')
        k(f'v_cndmask_b32 v{VF}, v85, v86, vcc')
        k(f'v_cndmask_b32 v{VF2}, v87, v86, vcc')
        k(f'v_cndmask_b32 v{VB}, 0, 1, vcc')
        k('s_lshl_b32 s28, s26, 11')
        k(f's_add_u32 s28, s28, s{S_RB}')
        k(f's_add_u32 s29, s{S_RB}, {R_P}')
        k(f's_mul_i32 s31, s{S_PX}, 40')
        k('s_add_u32 s31, s31, s26')
        k('s_lshl_b32 s31, s31, 10')
        k(f's_add_u32 s31, s31, {OP}')
        k(f's_mov_b32 s32, {hex(k_rec.OOB)}')
        k('s_lshl_b32 s33, s26, 3')
        k(f's_add_u32 s33, s33, s{S_PX}')
        k('s_lshl_b32 s33, s33, 7')
        k(f's_add_u32 s33, s33, s{S_FL}')
        k(f's_add_u32 s33, s33, {FL_T}')
        k('s_mov_b32 s34, 0')

        def tbases():
            k('s_add_u32 s36, s28, s20')
            for ks in range(1, 5):
                k(f's_add_u32 s{36 + ks}, s36, {ks * 40960}')
            k('s_add_u32 s41, s29, s20')
            k('s_add_u32 s42, s41, 4096')
            k('s_add_u32 s43, s41, 8192')
            k('s_add_u32 s35, s34, 2')

        def aload(ks, i):
            return f'buffer_load_dwordx4 {vr(AFR + (ks * 2 + i) * 4, 4)}, v{VA}, s[4:7], s{36 + ks} offen offset:{i * 256} sc1'

        def pload(ks, mt):
            q = mt * 5 + ks
            return f'buffer_load_dwordx4 {vr(PFR + (ks * 2 + mt) * 4, 4)}, v2, s[4:7], s{41 + q // 4} offen offset:{(q % 4) * 1024} sc1'

        def tmfma(ks):
            for i in range(2):
                for mt in range(2):
                    d = TACC + (mt * 2 + i) * 4
                    c = '0' if ks == 0 else vr(d, 4)
                    k(f'v_mfma_f32_16x16x32_bf16 {vr(d, 4)}, {vr(AFR + (ks * 2 + i) * 4, 4)}, {vr(PFR + (ks * 2 + mt) * 4, 4)}, {c}')

        def tcvt():
            for n in range(8):
                k(f'v_cvt_pk_bf16_f32 v{TO + n}, v{TACC + 2 * n}, v{TACC + 2 * n + 1}')
            k('s_mov_b32 s32, s31')
            k(f's_add_u32 s31, s31, {8 * 40960}')
            k('s_add_u32 s34, s34, 1')

        opst = [f'buffer_store_dwordx4 {vr(TO + 4 * mt, 4)}, v{(2, VO1)[mt]}, s[4:7], s32 offen sc1' for mt in range(2)]

        def tflag(add):
            return [f's_add_i32 s15, s34, {add}', 's_max_i32 s15, s15, 0', 'v_mov_b32 v8, s15', 's_mov_b64 exec, 1',
                    'buffer_store_dword v8, v7, s[4:7], s33 offen sc1', 's_mov_b64 exec, -1']

        k.label(f'{pfx}_tl')
        tbases()
        poll_vec(k, VF, VB, 35, VC)
        seg_body(extra=[f(ks, i) for ks in range(5) for f in (aload, pload) for i in range(2)], late=opst + [tflag(-1)])
        epilogue()
        k('s_waitcnt vmcnt(6)')
        for ks in range(5):
            tmfma(ks)
        publish()
        tcvt()
        k('s_cmp_lt_u32 s24, 64')
        k(f's_cbranch_scc1 {pfx}_tl')
        wstamp(k, 2)
        k.label(f'{pfx}_tt')
        for ins in opst:
            k(ins)
        k('s_cmp_eq_u32 s34, 64')
        k(f's_cbranch_scc1 {pfx}_te')
        tbases()
        for ks in range(4):
            for i in range(2):
                k(aload(ks, i))
        k('s_waitcnt vmcnt(8)')
        for ins in tflag(0):
            k(ins)
        k('s_cmp_ge_u32 s34, 62')
        k('s_cselect_b64 vcc, -1, 0')
        k(f'v_cndmask_b32 v{VF}, v{VF}, v{VF2}, vcc')
        k(f'v_cndmask_b32 v{VB}, v{VB}, 1, vcc')
        poll_vec(k, VF, VB, 35, VC, slp=1)
        for ks in range(5):
            k(pload(ks, 0))
            k(pload(ks, 1))
        k(aload(4, 0))
        k(aload(4, 1))
        for ks in range(5):
            k(f's_waitcnt vmcnt({10 - 2 * ks if ks < 4 else 0})')
            tmfma(ks)
        ring_adv(k, 20)
        tcvt()
        k(f's_branch {pfx}_tt')
        k.label(f'{pfx}_te')
        k('s_waitcnt vmcnt(0)')
        for ins in tflag(0):
            k(ins)
        wstamp(k, 3)
        k('s_endpgm')
        k.label(f'{pfx}_red')
        RP, RX, RA, VX = 96, 128, 132, 10
        k(f's_mul_i32 s26, s{S_PX}, 5')
        k('s_add_u32 s26, s26, s27')
        k('s_cmp_ge_u32 s26, 20')
        k('s_cselect_b32 s15, 20, 0')
        k(f's_cselect_b32 s16, {16 * 1280}, 0')
        k('s_sub_u32 s27, s26, s15')
        k('s_lshl_b32 s28, s26, 10')
        k(f's_add_u32 s31, s28, {OP}')
        k(f's_add_u32 s32, s28, {X1}')
        k('s_lshl_b32 s15, s27, 6')
        k('s_add_u32 s16, s16, s15')
        k(f's_cmp_eq_u32 s{S_LAYER}, 0')
        k('s_cselect_b32 s33, s16, s28')
        k('s_cselect_b64 vcc, -1, 0')
        k('v_and_b32 v84, 15, v1')
        k('v_mul_u32_u24 v84, 1280, v84')
        k('v_lshrrev_b32 v85, 4, v1')
        k('v_lshl_add_u32 v84, v85, 4, v84')
        k(f'v_cndmask_b32 v{VX}, v2, v84, vcc')
        k('v_and_b32 v84, 7, v1')
        k('v_lshlrev_b32 v84, 7, v84')
        k('s_lshl_b32 s15, s27, 10')
        k(f's_add_u32 s15, s15, {FL_T}')
        k(f'v_add_u32 v{VF}, s15, v84')
        k('s_mov_b32 s35, 1')
        k('s_mov_b32 s34, 0xffff0000')
        k(f'v_mov_b32 v{VC}, 0')

        def rloads():
            out = []
            for p in range(8):
                out.append([f'buffer_load_dwordx4 {vr(RP + 4 * p, 4)}, v2, s[4:7], s31 offen sc1', 's_add_u32 s31, s31, 40960'])
            out.append([f'buffer_load_dwordx4 {vr(RX, 4)}, v{VX}, s[{S_XS}:{S_XS + 3}], s33 offen', 's_add_u32 s33, s33, 40960'])
            return out

        def rsum():
            for q in range(4):
                k(f'v_lshlrev_b32 v{RA + 2 * q}, 16, v{RP + q}')
                k(f'v_and_b32 v{RA + 2 * q + 1}, s34, v{RP + q}')
            for p in range(1, 9):
                for q in range(4):
                    t_ = RA + 8 + 2 * (q % 2)
                    k(f'v_lshlrev_b32 v{t_}, 16, v{RP + 4 * p + q}')
                    k(f'v_and_b32 v{t_ + 1}, s34, v{RP + 4 * p + q}')
                    k(f'v_pk_add_f32 {vr(RA + 2 * q, 2)}, {vr(RA + 2 * q, 2)}, {vr(t_, 2)}')
            for q in range(4):
                k(f'v_cvt_pk_bf16_f32 v{RA + 12 + q}, v{RA + 2 * q}, v{RA + 2 * q + 1}')
            k(f'buffer_store_dwordx4 {vr(RA + 12, 4)}, v2, s[4:7], s32 offen')
            k('s_add_u32 s32, s32, 40960')
            k('s_add_u32 s35, s35, 1')

        k.label(f'{pfx}_rl')
        poll_vec(k, VF, None, 35, VC, first=False)
        seg_body(late=rloads() + [f'buffer_load_dword v{VC}, v{VF}, s[4:7], s{S_FL} offen sc1'])
        epilogue()
        publish()
        rsum()
        k('s_cmp_lt_u32 s24, 64')
        k(f's_cbranch_scc1 {pfx}_rl')
        k.label(f'{pfx}_rt')
        poll_vec(k, VF, None, 35, VC, slp=1)
        for g_ in rloads():
            for ins in g_:
                k(ins)
        k('s_waitcnt vmcnt(0)')
        rsum()
        k('s_cmp_le_u32 s35, 64')
        k(f's_cbranch_scc1 {pfx}_rt')
        if STAMPS:
            k('s_mov_b32 s3, 0')
            wstamp(k, 4)
        k('s_endpgm')
        return
    k('s_lshr_b32 s15, s3, 1')
    k('s_add_u32 s15, s15, 4')
    k('s_lshl_b32 s15, s15, 10')
    k('s_and_b32 s16, s3, 1')
    k('s_lshl_b32 s16, s16, 3')
    k('s_add_u32 s15, s15, s16')
    k('v_add_u32 v4, s15, v2')
    k('v_and_b32 v9, 15, v1')
    k('v_lshrrev_b32 v10, 4, v1')
    k('v_and_b32 v11, 7, v1')
    k('v_lshlrev_b32 v11, 4, v11')
    k('v_lshl_add_u32 v11, v10, 7, v11')
    k('v_lshrrev_b32 v8, 1, v11')
    k(f'v_add_u32 v3, {L_Q}, v3')
    k(f'v_add_u32 v4, {L_Q}, v4')
    k('s_mul_i32 s26, s3, 6144')
    k(f's_add_u32 s26, s26, {L_Q}')
    k('v_add_u32 v12, s26, v2')
    k(f'v_mov_b32 v13, {f32(NEG)}')
    k('v_lshlrev_b32 v14, 2, v10')
    for r in range(4):
        k(f'v_add_u32 v15, {r}, v14')
        k(f'v_cmp_le_u32 s[{32 + 2 * r}:{33 + 2 * r}], v15, v9')
    k('s_mov_b32 s40, -1')
    k('s_mov_b32 s41, 0')
    k(f's_mov_b32 s42, {f32(SCALE_L2E)}')
    k('s_lshr_b32 s31, s3, 1')
    k(f's_mul_i32 s20, s31, {RS}')
    k('s_add_u32 s60, s31, 1')
    k('s_mul_i32 s26, s9, 12288')
    k(f's_add_u32 s26, s26, s{S_RB}')
    k(f's_add_u32 s26, s26, {R_K}')
    k('s_mul_i32 s27, s9, 3072')
    k(f's_add_u32 s27, s27, s{S_RB}')
    k(f's_add_u32 s27, s27, {R_KM}')
    k('s_and_b32 s28, s3, 1')
    k('s_mul_i32 s28, s28, 5120')
    k(f's_add_u32 s28, s28, s{S_RB}')
    k(f's_add_u32 s28, s28, {R_P}')
    k('s_lshl_b32 s29, s9, 10')
    k('v_add_u32 v14, s29, v2')
    k('s_lshl_b32 s29, s9, 8')
    k('s_add_u32 s29, s29, 4096')
    k('v_lshlrev_b32 v15, 3, v10')
    k('v_lshl_add_u32 v15, v9, 4, v15')
    k('v_add_u32 v15, s29, v15')
    k(f's_lshl_b32 s48, s{S_HEAD}, 7')
    k('v_and_b32 v84, 3, v1')
    k('v_lshlrev_b32 v84, 2, v84')
    k('v_add_u32 v84, s48, v84')
    k(f'v_add_u32 v85, {FL_KM}, v84')
    k('s_lshl_b32 s50, s3, 2')
    k('s_add_u32 s50, s50, s48')
    k(f's_add_u32 s50, s50, s{S_FL}')
    k(f's_add_u32 s50, s50, {FL_P}')
    QF, KF, MF, SD, QN = 112, 136, 184, 208, 232
    k('s_mov_b32 s62, 0')

    def qwrite(buf):
        for mt in range(2):
            o = 96 + mt * 8
            a = lambda i, r: ACC + (mt * 3 + i) * 4 + r
            for i in range(3):
                k(f'v_cvt_pk_bf16_f32 v{o + 2 * i}, v{a(i, 0)}, v{a(i, 1)}')
                k(f'v_cvt_pk_bf16_f32 v{o + 2 * i + 1}, v{a(i, 2)}, v{a(i, 3)}')
            k(f'ds_write_b128 v3, {vr(o, 4)} offset:{buf * 12288 + mt * 6144}')
            k(f'ds_write_b64 v4, {vr(o + 4, 2)} offset:{buf * 12288 + mt * 6144}')

    def kbases():
        k('s_add_u32 s52, s26, s20')
        k('s_add_u32 s53, s52, 4096')
        k('s_add_u32 s54, s52, 8192')

    def gpair(withk):
        seg_body(late=[f'buffer_load_dword v86, v84, s[4:7], s{S_FL} offen sc1'] if withk else [])
        qwrite(0)
        k('s_waitcnt vmcnt(0)')
        if withk:
            kbases()
            poll_vec(k, 84, None, 60, 86, first=False)
        seg_body(extra=ffrag_loads(KF, 52, 53, 54, 2) if withk else [], span=17)
        qwrite(1)
        k('s_waitcnt lgkmcnt(0)')
        k('s_barrier')
        for f in range(6):
            k(f'ds_read_b128 {vr(QN + 4 * f, 4)}, v12 offset:{f * 1024}')

    gpair(False)
    k('s_waitcnt vmcnt(0)')
    k.label(f'{pfx}_loop')
    k('s_waitcnt lgkmcnt(0)')
    for r in range(24):
        k(f'v_mov_b32 v{QF + r}, v{QN + r}')
    k('s_cmp_eq_u32 s62, 62')
    k(f's_cbranch_scc1 {pfx}_last')
    gpair(True)
    k(f's_branch {pfx}_sc')
    k.label(f'{pfx}_last')
    kbases()
    poll_vec(k, 84, None, 60, 86)
    for ins in ffrag_loads(KF, 52, 53, 54, 2):
        k(ins)
    k.label(f'{pfx}_sc')
    k('s_waitcnt vmcnt(0)')
    for f in range(6):
        for n in range(2):
            c = '0' if f == 0 else vr(SD + 4 * n, 4)
            k(f'v_mfma_f32_16x16x32_bf16 {vr(SD + 4 * n, 4)}, {vr(KF + 24 * n + 4 * f, 4)}, {vr(QF + 4 * f, 4)}, {c}')
    k('s_add_u32 s52, s27, s20')
    k('s_add_u32 s53, s28, s20')
    poll_vec(k, 85, None, 60, 86, slp=1)
    for f in range(4):
        k(f'buffer_load_dwordx4 {vr(MF + f * 4, 4)}, v11, s[4:7], s52 offen offset:{f * 512} sc1')
    for sl in range(4):
        k(f'buffer_load_dwordx2 {vr(MF + 16 + 2 * sl, 2)}, v8, s[4:7], s52 offen offset:{2048 + sl * 256} sc1')
    k('s_bitcmp0_b32 s3, 0')
    for r in range(4):
        k(f's_cselect_b64 s[56:57], s[{32 + 2 * r}:{33 + 2 * r}], -1')
        k(f's_cselect_b64 s[58:59], 0, s[{32 + 2 * r}:{33 + 2 * r}]')
        k(f'v_cndmask_b32 v{SD + r}, v13, v{SD + r}, s[56:57]')
        k(f'v_cndmask_b32 v{SD + 4 + r}, v13, v{SD + 4 + r}, s[58:59]')
    vals = list(range(SD, SD + 12))
    mx, tmp = 220, 221
    k(f'v_max3_f32 v{mx}, v{vals[0]}, v{vals[1]}, v{vals[2]}')
    k(f'v_max3_f32 v{mx}, v{mx}, v{vals[3]}, v{vals[4]}')
    k(f'v_max3_f32 v{mx}, v{mx}, v{vals[5]}, v{vals[6]}')
    k(f'v_max_f32 v{mx}, v{mx}, v{vals[7]}')
    for f in range(6):
        k(f's_waitcnt vmcnt({7 - f if f < 4 else 2 * (5 - f)})')
        c = '0' if f == 0 else vr(SD + 8, 4)
        k(f'v_mfma_f32_16x16x32_bf16 {vr(SD + 8, 4)}, {vr(MF + 4 * f, 4)}, {vr(QF + 4 * f, 4)}, {c}')
    for r in range(4):
        k(f'v_cndmask_b32 v{SD + 8 + r}, v13, v{SD + 8 + r}, s[40:41]')
    k(f'v_max3_f32 v{mx}, v{mx}, v{vals[8]}, v{vals[9]}')
    k(f'v_max3_f32 v{mx}, v{mx}, v{vals[10]}, v{vals[11]}')
    allreduce_g(k, mx, tmp, 'v_max_f32')
    k(f'v_mul_f32 v{mx}, s42, v{mx}')
    for v in vals:
        k(f'v_fma_f32 v{v}, v{v}, s42, -v{mx}')
    for v in vals:
        k(f'v_exp_f32 v{v}, v{v}')
    for r in range(4):
        k(f'v_cndmask_b32 v{SD + 8 + r}, 0, v{SD + 8 + r}, s[40:41]')
    k(f'v_add_f32 v{mx}, v{vals[0]}, v{vals[1]}')
    for v in vals[2:]:
        k(f'v_add_f32 v{mx}, v{mx}, v{v}')
    allreduce_g(k, mx, tmp)
    k(f'v_rcp_f32 v{mx}, v{mx}')
    for v in vals:
        k(f'v_mul_f32 v{v}, v{v}, v{mx}')
    o = 224
    for p in range(6):
        k(f'v_cvt_pk_bf16_f32 v{o + p}, v{SD + 2 * p}, v{SD + 2 * p + 1}')
    k(f'buffer_store_dwordx4 {vr(o, 4)}, v14, s[4:7], s53 offen')
    k('s_mov_b64 exec, s[40:41]')
    k(f'buffer_store_dwordx2 {vr(o + 4, 2)}, v15, s[4:7], s53 offen')
    k('s_mov_b64 exec, -1')
    ring_adv(k, 20, 2)
    k('s_add_u32 s60, s60, 2')
    k('s_add_u32 s62, s62, 2')
    k('s_waitcnt vmcnt(0)')
    put_flag(k, 62, 50, 220, 7)
    k('s_cmp_lt_u32 s62, 64')
    k(f's_cbranch_scc1 {pfx}_loop')
    wstamp(k, 3)
    k('s_endpgm')


def emit_u(k):
    pfx = f'{NAME}_u'
    k('v_lshlrev_b32 v2, 4, v1')
    k('v_mov_b32 v7, 0')
    k(f's_mul_i32 s10, s{S_HEAD}, {192 * 1280}')
    k('s_mul_i32 s11, s3, 320')
    k('s_add_u32 s10, s10, s11')
    k('s_mul_i32 s11, s3, 30720')
    stage_setup(k, 16, 17, 1, 1280, 320, 18, 4)
    k('v_add_u32 v17, s11, v17')
    emit_wo_stage(k, S_WSRD, M_60, 320, 10, 96)
    census_wait(k, NAME, 16, 26, 27, 28)
    L_V = 122880
    k(f's_and_b32 s9, s{S_HEAD}, 3')
    k('s_mul_i32 s12, s9, 12288')
    k('s_lshl_b32 s13, s3, 10')
    k('s_add_u32 s12, s12, s13')
    k(f's_add_u32 s12, s12, s{S_RB}')
    k(f's_add_u32 s12, s12, {R_V}')
    k(f's_add_u32 s13, s13, {L_V}')
    k(f'v_add_u32 v5, {L_V}, v2')
    k('s_mov_b32 s19, 12288')
    k('s_mul_i32 s14, s9, 40960')
    k('s_mul_i32 s15, s3, 10240')
    k('s_add_u32 s14, s14, s15')
    k(f's_add_u32 s14, s14, s{S_RB}')
    k('v_and_b32 v3, 15, v1')
    k('v_lshlrev_b32 v3, 6, v3')
    k('v_lshrrev_b32 v4, 4, v1')
    k('v_lshl_add_u32 v3, v4, 4, v3')
    k(f's_lshl_b32 s21, s{S_HEAD}, 7')
    k(f's_add_u32 s21, s21, s{S_FL}')
    k('s_lshl_b32 s15, s3, 2')
    k('s_add_u32 s21, s21, s15')
    k(f's_add_u32 s21, s21, {FL_U}')
    k('v_and_b32 v6, 3, v1')
    k('v_lshlrev_b32 v6, 2, v6')
    k('v_bfe_u32 v8, v1, 2, 2')
    k('v_lshl_add_u32 v6, v8, 7, v6')
    k('v_bfe_u32 v8, v1, 4, 1')
    k('v_lshl_add_u32 v6, v8, 12, v6')
    k(f's_lshl_b32 s15, s{S_PX}, 9')
    k('v_add_u32 v6, s15, v6')
    k('s_mov_b32 s20, 0')
    k('s_mov_b32 s24, 1')
    wstamp(k, 1)
    AF, ACC, OUT = 16, [112, 120], [128, 132]

    def epi(p, nt):
        a, o = ACC[p], OUT[p]
        for q in range(4):
            k(f'v_cvt_pk_bf16_f32 v{o + q}, v{a + 2 * q}, v{a + 2 * q + 1}')
        k(f'buffer_store_dwordx4 {vr(o, 4)}, v3, s[4:7], s{16 + nt // 4} offen offset:{(nt % 4) * 1024}')

    k.label(f'{pfx}_loop')
    k('s_add_u32 s15, s12, s20')
    k('s_add_u32 s16, s14, s20')
    k('s_add_u32 s17, s16, 4096')
    k('s_add_u32 s18, s16, 8192')
    poll_vec(k, 6, None, 24, 8, slp=1)
    for i in range(3):
        k(f's_add_u32 m0, s13, {4096 * i}')
        k(f's_add_u32 s22, s15, {4096 * i}')
        k(f'buffer_load_dwordx4 v2, s[4:7], s22 offen sc1 lds')
    k('s_waitcnt vmcnt(0)')
    k('s_barrier')
    for f in range(6):
        for mt in range(2):
            d = AF + (mt * 6 + f) * 4
            if f < 4:
                k(f'ds_read_b128 {vr(d, 4)}, v5 offset:{mt * 4096 + f * 1024}')
            else:
                if f == 5 and mt == 1:
                    k('s_waitcnt lgkmcnt(12)')
                for h in range(2):
                    k(f'ds_read_b64 {vr(d + 2 * h, 2)}, v5 offset:{8192 + (2 * (f - 4) + h) * 1024 + mt * 8}')
    for nt in range(10):
        p = nt % 2
        for f in range(6):
            if nt == 0:
                k(f's_waitcnt lgkmcnt({14 - 2 * f if f < 4 else 4 * (5 - f)})')
            for mt in range(2):
                d = ACC[p] + mt * 4
                c = '0' if f == 0 else vr(d, 4)
                k(f'v_mfma_f32_16x16x32_bf16 {vr(d, 4)}, {vr(AF + (mt * 6 + f) * 4, 4)}, {ar((nt * 6 + f) * 4, 4)}, {c}')
            if f == 2 and nt > 0:
                epi(1 - p, nt - 1)
    k('v_add_u32 v5, s19, v5')
    k('s_add_u32 s13, s13, s19')
    k('s_sub_u32 s19, 0, s19')
    ring_adv(k, 20)
    epi(1, 9)
    k('s_waitcnt vmcnt(0)')
    put_flag(k, 24, 21, 8, 7)
    if STAMPS:
        k('s_cmp_eq_u32 s24, 1')
        k(f's_cbranch_scc0 {pfx}_nst')
        wstamp(k, 8)
        k.label(f'{pfx}_nst')
    k('s_add_u32 s24, s24, 1')
    k('s_cmp_le_u32 s24, 64')
    k(f's_cbranch_scc1 {pfx}_loop')
    wstamp(k, 2)
    k(f's_cmp_lg_u32 s{S_LAYER}, 0')
    k(f's_cbranch_scc1 {NAME}_end')
    k(f's_lshl_b32 s73, s{S_HEAD}, 2')
    k('s_add_u32 s73, s73, s3')
    k_prep.emit_bjobs(k, NAME, 73, 128)
    wstamp(k, 3)
    k('s_endpgm')


def make_mega(stamps=False):
    global STAMPS
    STAMPS = stamps
    k = Kernel('mega0_kernel', vgpr=256, agpr=256)
    k(f's_mov_b32 s{S_LAYER}, 0')
    k.label(f'{NAME}_common')
    srd_load(k, 4, 'ws')
    srd_load(k, S_DBG, 'dbg')
    srd_load(k, S_XS, 'x')
    k('s_load_dwordx8 s[8:15], s[0:1], 16')
    for r in (S_WSRD, S_WSRD2):
        k(f's_mov_b32 s{r + 2}, {hex(640 * 12288)}')
        k(f's_mov_b32 s{r + 3}, 0x20000')
    k(f's_mov_b32 s{M_60}, -1')
    k(f's_mov_b32 s{M_60 + 1}, 0x0fffffff')
    wave_lane(k, 3, 1)
    k(f's_mov_b32 s{S_WG}, s2')
    k('s_cmp_ge_u32 s2, 256')
    k(f's_cbranch_scc1 {NAME}_end')
    k(f's_mul_i32 s{S_FL}, s{S_LAYER}, {FL_SZ}')
    k(f's_add_u32 s{S_FL}, s{S_FL}, {FL}')
    k(f's_and_b32 s{S_PX}, s2, 7')
    k('s_waitcnt lgkmcnt(0)')
    k(f's_add_u32 s16, s4, {X1}')
    k('s_addc_u32 s17, s5, 0')
    k(f's_cmp_eq_u32 s{S_LAYER}, 0')
    k(f's_cselect_b32 s{S_XS}, s{S_XS}, s16')
    k(f's_cselect_b32 s{S_XS + 1}, s{S_XS + 1}, s17')
    k(f's_bfe_u32 s{S_KIND}, s2, 0x20005')
    k(f's_mov_b64 s[{S_WSRD}:{S_WSRD + 1}], s[8:9]')
    k(f's_mov_b64 s[{S_WSRD2}:{S_WSRD2 + 1}], s[10:11]')
    k('s_cmp_lt_u32 s2, 128')
    k(f's_cselect_b32 s16, 2, s{S_KIND}')
    for kind, src in ((0, 10), (1, 12), (3, 14)):
        k(f's_cmp_eq_u32 s16, {kind}')
        k(f's_cselect_b64 s[{S_WSRD}:{S_WSRD + 1}], s[{src}:{src + 1}], s[{S_WSRD}:{S_WSRD + 1}]')
    census_post(k, NAME)
    wstamp(k, 0)
    k('s_cmp_lt_u32 s2, 128')
    k(f's_cbranch_scc1 {NAME}_rec')
    k(f's_lshl_b32 s8, s{S_PX}, 2')
    k('s_bfe_u32 s9, s2, 0x20003')
    k(f's_add_u32 s{S_HEAD}, s8, s9')
    k(f's_mul_i32 s{S_RB}, s{S_PX}, {RD * RS}')
    k(f's_add_u32 s{S_RB}, s{S_RB}, {RING}')
    k(f's_cmp_eq_u32 s{S_KIND}, 2')
    k(f's_cbranch_scc1 {NAME}_qrole')
    k(f's_cmp_eq_u32 s{S_KIND}, 3')
    k(f's_cbranch_scc1 {NAME}_urole')
    emit_proj(k, False)
    k.label(f'{NAME}_urole')
    emit_u(k)
    k.label(f'{NAME}_qrole')
    if OPT.get('gemmonly') or OPT.get('noq'):
        k('s_endpgm')
    emit_proj(k, True)
    k.flush_deferred()
    k.label(f'{NAME}_rec')
    if OPT.get('rdelay'):
        k(f's_sleep {OPT["rdelay"]}')
    if OPT.get('gemmonly'):
        k('s_endpgm')
    k_rec.emit_rec(k, NAME, stamps=stamps)
    k.label(f'{NAME}_fail')
    k('s_mov_b64 exec, 1')
    k(f'v_mov_b32 v24, s{S_WG}')
    k('v_add_u32 v24, 0x1000, v24')
    k('v_mov_b32 v25, 64')
    k(f'buffer_store_dword v24, v25, s[{S_DBG}:{S_DBG + 3}], 0 offen')
    k.label(f'{NAME}_end')
    k('s_endpgm')
    k1 = Kernel('mega1_kernel', vgpr=256, agpr=256)
    k1(f's_mov_b32 s{S_LAYER}, 1')
    k1(f's_mov_b32 s99, 0')
    k1(f's_branch {NAME}_common')
    return k, k1
```

```python
from gen_common import *
from k_rec2 import OPT

N_LN = 512
N_INIT = 16
N_HB = 240
N_FILL = 46
J_LN = 0
J_INIT = J_LN + N_LN
J_HB = J_INIT + N_INIT
J_FILL = J_HB + N_HB
J_END = J_FILL + N_FILL
J_FOLD, J_PACKV, J_PACKO2, J_BEND = 0, 320, 420, 520


def emit_pack(k, srd, dstmode=0):
    k('v_lshlrev_b32 v2, 2, v1')
    if dstmode == 0:
        k('v_lshrrev_b32 v3, 3, v1')
        k('v_mul_lo_u32 v3, v3, s25')
        k('v_and_b32 v4, 7, v1')
        k('v_lshl_add_u32 v3, v4, 5, v3')
    elif dstmode == 1:
        k('v_lshrrev_b32 v3, 3, v1')
        k('v_add_u32 v3, s25, v3')
        k('v_mul_u32_u24 v4, 205, v3')
        k('v_lshrrev_b32 v4, 10, v4')
        k('v_mul_u32_u24 v5, 5, v4')
        k('v_sub_u32 v3, v3, v5')
        k('v_lshlrev_b32 v3, 10, v3')
        k('v_mul_u32_u24 v4, 307200, v4')
        k('v_add_u32 v3, v3, v4')
        k('v_and_b32 v4, 7, v1')
        k('v_lshl_add_u32 v3, v4, 5, v3')
    else:
        k('v_lshrrev_b32 v3, 4, v1')
        k('v_lshlrev_b32 v3, 1, v3')
        k('v_bfe_u32 v4, v1, 1, 1')
        k('v_add_u32 v3, v3, v4')
        k('v_mul_u32_u24 v3, 20480, v3')
        k('v_bfe_u32 v4, v1, 2, 2')
        k('v_lshl_add_u32 v3, v4, 6, v3')
        k('v_and_b32 v4, 1, v1')
        k('v_lshl_add_u32 v3, v4, 5, v3')
    k('s_mov_b32 s26, 0x05040100')
    k('s_mov_b32 s27, 0x07060302')
    for g in range(4):
        k('s_mov_b32 s28, s20')
        for j in range(8):
            if j == 4:
                k('s_add_u32 s28, s20, s22')
            k(f'buffer_load_dword v{8 + g * 8 + j}, v2, {sr(srd, 4)}, s28 offen')
            if j not in (3, 7):
                k('s_add_u32 s28, s28, s23')
        if g < 3:
            k('s_add_u32 s20, s20, s21')
    for g in range(4):
        k(f's_waitcnt vmcnt({24 - g * 8 + 2 * g})')
        b = 8 + g * 8
        o = 40 + g * 8
        for p in range(4):
            k(f'v_perm_b32 v{o + p}, v{b + 2 * p + 1}, v{b + 2 * p}, s26')
            k(f'v_perm_b32 v{o + 4 + p}, v{b + 2 * p + 1}, v{b + 2 * p}, s27')
        k(f'buffer_store_dwordx4 {vr(o, 4)}, v3, s[4:7], s24 offen offset:{g * 256}')
        k(f'buffer_store_dwordx4 {vr(o + 4, 4)}, v3, s[4:7], s24 offen offset:{g * 256 + 16}')


def emit_ln4(k):
    k('v_and_b32 v2, 15, v1')
    k('v_lshrrev_b32 v3, 4, v1')
    k('v_mul_u32_u24 v4, 1280, v3')
    k('v_lshl_add_u32 v4, v2, 4, v4')
    k(f's_mul_i32 s20, s2, {4 * 1280}')
    for i in range(5):
        k(f'buffer_load_dwordx4 {vr(8 + 4 * i, 4)}, v4, s[36:39], s20 offen offset:{i * 256}')
    k('v_lshrrev_b32 v5, 2, v2')
    k('v_lshlrev_b32 v5, 10, v5')
    k('v_and_b32 v6, 3, v2')
    k('v_lshl_add_u32 v5, v6, 8, v5')
    k('v_lshl_add_u32 v5, v3, 4, v5')
    k('s_lshr_b32 s21, s2, 2')
    k('s_mul_i32 s21, s21, 20480')
    k('s_and_b32 s22, s2, 3')
    k('s_lshl_b32 s22, s22, 6')
    k('s_add_u32 s21, s21, s22')
    k(f's_add_u32 s21, s21, {HF}')
    k('s_mov_b32 s30, 0xffff0000')
    k('s_waitcnt vmcnt(0)')
    F = 32

    def rowsum(v):
        for n in (8, 4, 2, 1):
            k(f'v_add_f32_dpp v{v}, v{v}, v{v} row_ror:{n} row_mask:0xf bank_mask:0xf')
    for i in range(20):
        k(f'v_lshlrev_b32 v{F + 2 * i}, 16, v{8 + i}')
        k(f'v_and_b32 v{F + 2 * i + 1}, s30, v{8 + i}')
        if i == 1:
            k(f'v_pk_add_f32 v[6:7], {vr(F, 2)}, {vr(F + 2, 2)}')
        elif i > 1:
            k(f'v_pk_add_f32 v[6:7], v[6:7], {vr(F + 2 * i, 2)}')
    k('v_add_f32 v6, v6, v7')
    rowsum(6)
    k(f'v_mul_f32 v6, {f32(-1.0 / 640)}, v6')
    k('v_mov_b32 v7, v6')
    for i in range(20):
        k(f'v_pk_add_f32 {vr(F + 2 * i, 2)}, {vr(F + 2 * i, 2)}, v[6:7]')
        if i == 0:
            k(f'v_pk_mul_f32 v[28:29], {vr(F, 2)}, {vr(F, 2)}')
        else:
            k(f'v_pk_fma_f32 v[28:29], {vr(F + 2 * i, 2)}, {vr(F + 2 * i, 2)}, v[28:29]')
    k('v_add_f32 v28, v28, v29')
    rowsum(28)
    k(f'v_mov_b32 v6, {f32(1e-5)}')
    k(f'v_fmac_f32 v6, {f32(1.0 / 640)}, v28')
    k('v_rsq_f32 v6, v6')
    k('v_mov_b32 v7, v6')
    for i in range(20):
        k(f'v_pk_mul_f32 {vr(F + 2 * i, 2)}, {vr(F + 2 * i, 2)}, v[6:7]')
        k(f'v_cvt_pk_bf16_f32 v{8 + i}, v{F + 2 * i}, v{F + 2 * i + 1}')
        if i % 4 == 3:
            k(f'buffer_store_dwordx4 {vr(8 + i - 3, 4)}, v5, s[4:7], s21 offen')
            k('s_add_u32 s21, s21, 4096')


def emit_fold(k):
    k('s_and_b32 s72, s2, 3')
    k('s_lshr_b32 s2, s2, 2')
    sdivmod(k, 64, 65, 2, 40)
    sdivmod(k, 66, 67, 65, 5)
    k('v_and_b32 v2, 15, v1')
    k('v_lshrrev_b32 v3, 4, v1')
    k('v_lshrrev_b32 v4, 2, v2')
    k('v_and_b32 v5, 3, v2')
    k('v_lshlrev_b32 v6, 3, v3')
    k('v_mul_u32_u24 v7, 20, v4')
    k('v_sub_u32 v6, v6, v7')
    k('v_mul_i32_i24 v7, 40, v6')
    k('v_mul_u32_u24 v8, 800, v4')
    k('v_add_u32 v7, v7, v8')
    k('v_lshl_add_u32 v7, v5, 1, v7')
    k('s_mul_i32 s20, s66, 3200')
    k('s_lshl_b32 s21, s67, 3')
    k('s_add_u32 s20, s20, s21')
    k('v_mov_b32 v9, 0x100000')
    BF = 16
    for kap in range(3):
        for j in range(8):
            e = 32 * kap + j
            k(f'v_add_u32 v10, {e}, v6')
            k('v_cmp_gt_u32 vcc, 20, v10')
            k(f'v_add_u32 v11, {e * 40}, v7')
            k('v_cndmask_b32 v11, v9, v11, vcc')
            k(f'buffer_load_ushort v{32 + kap * 8 + j}, v11, s[56:59], s20 offen')
    k('v_lshl_add_u32 v10, v4, 3, v5')
    k('v_mul_u32_u24 v10, 3840, v10')
    k('v_lshl_add_u32 v10, v3, 4, v10')
    k(f'v_add_u32 v11, {4 * 3840}, v10')
    k('s_mul_i32 s21, s64, 1280')
    k('s_mul_i32 s22, s66, 160')
    k('s_add_u32 s21, s21, s22')
    k(f's_mul_i32 s22, s72, {160 * 3840}')
    k('s_add_u32 s21, s21, s22')
    k('s_mul_i32 s22, s66, 307200')
    k('s_mul_i32 s23, s64, 5')
    k('s_add_u32 s23, s23, s67')
    k('s_lshl_b32 s23, s23, 10')
    k('s_add_u32 s22, s22, s23')
    k(f's_add_u32 s22, s22, {WBP}')
    k(f's_mul_i32 s23, s72, {5 * 15360}')
    k('s_add_u32 s22, s22, s23')
    k('v_lshlrev_b32 v12, 4, v1')
    for tt in range(5):
        for mt in range(2):
            for kap in range(3):
                k(f'buffer_load_dwordx4 {ar(((tt * 2 + mt) * 3 + kap) * 4, 4)}, v{10 + mt}, s[52:55], s21 offen offset:{kap * 64}')
        k(f's_add_u32 s21, s21, {32 * 3840}')
    k('s_waitcnt vmcnt(30)')
    for n in range(12):
        k(f'v_lshl_or_b32 v{BF + n}, v{33 + 2 * n}, 16, v{32 + 2 * n}')
    for tt in range(5):
        d = 56 + tt * 8
        k(f's_waitcnt vmcnt({6 * (4 - tt)})')
        for mt in range(2):
            for kap in range(3):
                c = '0' if kap == 0 else vr(d + 4 * mt, 4)
                k(f'v_mfma_f32_16x16x32_bf16 {vr(d + 4 * mt, 4)}, {ar(((tt * 2 + mt) * 3 + kap) * 4, 4)}, {vr(BF + 4 * kap, 4)}, {c}')
    for tt in range(5):
        d = 56 + tt * 8
        for p in range(4):
            k(f'v_cvt_pk_bf16_f32 v{d + p}, v{d + 2 * p}, v{d + 2 * p + 1}')
        k(f'buffer_store_dwordx4 {vr(d, 4)}, v12, s[4:7], s22 offen')
        k('s_add_u32 s22, s22, 15360')


def emit_packv(k):
    k(f's_sub_u32 s2, s2, {J_PACKV}')
    sdivmod(k, 66, 67, 2, 5)
    k(f's_mul_i32 s20, s66, {32 * 3840}')
    k('s_lshl_b32 s68, s67, 8')
    k('s_add_u32 s20, s20, s68')
    k('s_add_u32 s20, s20, 2560')
    k(f's_mov_b32 s21, {8 * 3840}')
    k(f's_mov_b32 s22, {4 * 3840}')
    k('s_mov_b32 s23, 3840')
    k('s_mul_i32 s24, s66, 15360')
    k(f's_add_u32 s24, s24, {WBP + 10240}')
    k('s_lshl_b32 s25, s67, 3')
    emit_pack(k, 52, 1)


def emit_packo2(k):
    k(f's_sub_u32 s2, s2, {J_PACKO2}')
    sdivmod(k, 66, 67, 2, 5)
    sdivmod(k, 64, 65, 66, 5)
    k('s_lshl_b32 s68, s65, 3')
    k('s_add_u32 s69, s68, 60')
    k('s_cmp_lt_u32 s65, 3')
    k('s_cselect_b32 s68, s68, s69')
    k('s_cmp_eq_u32 s65, 2')
    k('s_cselect_b32 s22, 64, 4')
    k('s_mul_i32 s22, s22, 1280')
    k('s_mul_i32 s69, s64, 160')
    k('s_add_u32 s68, s68, s69')
    k('s_mul_i32 s20, s68, 1280')
    k('s_lshl_b32 s68, s67, 8')
    k('s_add_u32 s20, s20, s68')
    k(f's_mov_b32 s21, {20 * 1280}')
    k('s_mov_b32 s23, 1280')
    k(f's_mul_i32 s24, s67, {8 * 20480}')
    k('s_lshl_b32 s68, s66, 10')
    k('s_add_u32 s24, s24, s68')
    k(f's_add_u32 s24, s24, {WO2P}')
    emit_pack(k, 60, 2)


def emit_bjobs(k, pfx, sjob, stride):
    srd_load(k, 52, 'wqkv')
    srd_load(k, 56, 'wphi')
    srd_load(k, 60, 'wo2')
    k('s_waitcnt lgkmcnt(0)')
    k.label(f'{pfx}_bj')
    k(f's_cmp_ge_u32 s{sjob}, {J_BEND}')
    k(f's_cbranch_scc1 {pfx}_bjdone')
    k(f's_mov_b32 s2, s{sjob}')
    k(f's_add_u32 s{sjob}, s{sjob}, {stride}')
    k(f's_cmp_ge_u32 s2, {J_PACKV}')
    k(f's_cbranch_scc1 {pfx}_bj1')
    emit_fold(k)
    k(f's_branch {pfx}_bj')
    k.label(f'{pfx}_bj1')
    k(f's_cmp_ge_u32 s2, {J_PACKO2}')
    k(f's_cbranch_scc1 {pfx}_bj2')
    emit_packv(k)
    k(f's_branch {pfx}_bj')
    k.label(f'{pfx}_bj2')
    emit_packo2(k)
    k(f's_branch {pfx}_bj')
    k.label(f'{pfx}_bjdone')


def emit_bmat(k):
    k('s_sub_u32 s8, s2, 8')
    k('s_and_b32 s9, s8, 31')
    k('s_bfe_u32 s12, s8, 0x10005')
    k('s_lshr_b32 s13, s8, 6')
    k('s_mov_b32 s20, -1')
    k('s_mov_b32 s21, 0x0fffffff')
    k('s_lshl_b32 s14, s12, 2')
    k('s_add_u32 s14, s14, s3')
    k(f's_mul_i32 s10, s9, {192 * 1280}')
    k('s_mul_i32 s11, s14, 160')
    k('s_add_u32 s10, s10, s11')
    k('s_mul_i32 s11, s3, 15360')
    stage_setup(k, 4, 5, 1, 1280, 160, 6, 8)
    k('v_add_u32 v5, s11, v5')
    st = Stager(k, 32, 4, 5, 10, 11, 0, 20, 1280, 160, 192, 96)
    st.issue_upto(0)
    k('v_bfe_u32 v6, v1, 2, 1')
    k('v_and_b32 v7, 1, v1')
    k('v_lshl_add_u32 v6, v6, 2, v7')
    k('v_bfe_u32 v7, v1, 3, 1')
    k('v_bfe_u32 v2, v1, 1, 1')
    k('v_lshl_add_u32 v7, v7, 1, v2')
    k('v_mul_u32_u24 v2, 40, v7')
    k('v_add_u32 v2, v2, v6')
    k('v_lshl_add_u32 v6, v7, 3, v6')
    k('v_lshrrev_b32 v3, 4, v1')
    k('v_mul_u32_u24 v6, 12288, v6')
    k('v_lshl_add_u32 v6, v3, 4, v6')
    k('v_mul_u32_u24 v7, 12288, v2')
    k('v_lshl_add_u32 v7, v3, 4, v7')
    k(f's_mul_i32 s15, s13, {200 * 12288}')
    k('s_mul_i32 s22, s9, 384')
    k('s_add_u32 s15, s15, s22')
    k('v_lshlrev_b32 v2, 4, v1')
    k('s_mul_i32 s22, s9, 40')
    k('s_mul_i32 s23, s14, 5')
    k('s_add_u32 s22, s22, s23')
    k('s_mul_i32 s22, s22, 20')
    k('s_mul_i32 s23, s13, 5')
    k('s_add_u32 s22, s22, s23')
    k('s_lshl_b32 s22, s22, 10')
    k(f's_add_u32 s22, s22, {BP}')
    AF, ACC, OUT = [8, 56], [104, 112], [120, 124]
    LA = 61440
    k('s_lshr_b32 s24, s3, 1')
    k(f's_mul_i32 s24, s24, {2 * 12288}')
    k('s_and_b32 s25, s3, 1')
    k('s_mul_i32 s25, s25, 192')
    k('s_add_u32 s15, s15, s24')
    k('s_add_u32 s15, s15, s25')
    k('s_mul_i32 s24, s3, 3072')

    def dma_a(base):
        for i in range(3):
            k(f's_add_u32 m0, s24, {base + i * 1024 - i * 64}')
            k(f'buffer_load_dwordx4 v6, s[16:19], s15 offen offset:{i * 64} lds')
        k('s_add_u32 s15, s15, s26')

    k(f's_mov_b32 s26, {40 * 12288}')
    dma_a(LA)
    k('s_cmp_eq_u32 s13, 3')
    k(f's_cselect_b32 s26, {160 * 12288}, s26')
    k(f's_cselect_b32 s27, {(640 - 32) * 12288}, 0')
    k('s_cselect_b64 vcc, -1, 0')
    k('s_sub_u32 s15, s15, s27')
    k('v_cndmask_b32 v6, v6, v7, vcc')
    st.foreign(3)
    for f in range(6):
        st.wait_rows(32 * (f + 1))
        for nt in range(5):
            for h in range(2):
                st.tread(ar((nt * 6 + f) * 4 + 2 * h, 2), 32 * f + 4 * h, 32 * nt)
        if st.issued < st.n:
            k('s_waitcnt lgkmcnt(0)')
            st.issue_upto(32 * (f + 1))
    k('s_waitcnt lgkmcnt(0)')
    k('s_barrier')
    for b in range(4):
        dma_a(b * 12288)

    def read_a(blk):
        base = LA if blk == 0 else (blk - 1) * 12288
        for n in range(12):
            k(f'ds_read_b128 {vr(AF[blk % 2] + 4 * n, 4)}, v{2 if blk else 3} offset:{(0 if blk == 0 else base) + n * 1024}')

    k(f'v_add_u32 v3, {LA}, v2')
    read_a(0)
    cnt = [0]

    def epi(p):
        a, o = ACC[p], OUT[p]
        for q in range(4):
            k(f'v_cvt_pk_bf16_f32 v{o + q}, v{a + 2 * q}, v{a + 2 * q + 1}')
        k(f'buffer_store_dwordx4 {vr(o, 4)}, v2, s[4:7], s23 offen')

    pend = None
    for blk in range(5):
        par = blk % 2
        k('s_waitcnt lgkmcnt(0)')
        for nt in range(5):
            p = cnt[0] % 2
            cnt[0] += 1
            for f in range(6):
                for mt in range(2):
                    d = ACC[p] + mt * 4
                    c = '0' if f == 0 else vr(d, 4)
                    k(f'v_mfma_f32_16x16x32_bf16 {vr(d, 4)}, {vr(AF[par] + (mt * 6 + f) * 4, 4)}, {ar((nt * 6 + f) * 4, 4)}, {c}')
                if f == 3 and pend is not None:
                    k(f's_add_u32 s23, s22, {pend[1]}')
                    epi(pend[0])
            pend = (p, nt * 20480 + blk * 1024)
            if nt == 3 and blk < 4:
                if blk == 0:
                    k('s_waitcnt vmcnt(3)')
                    k('s_barrier')
                read_a(blk + 1)
    k(f's_add_u32 s23, s22, {pend[1]}')
    epi(pend[0])
    if OPT.get('warm', 0):
        srd_load(k, 24, 'Wq')
        srd_load(k, 28, 'Wk')
        k('s_lshl_b32 s9, s8, 2')
        k('s_add_u32 s9, s9, s3')
        k('s_mul_i32 s9, s9, 7680')
        k('s_add_u32 s10, s9, 4096')
        k('s_waitcnt lgkmcnt(0)')
        for m in range(2):
            for i in range(8):
                k(f'buffer_load_dwordx4 {vr(8 + 4 * (m * 8 + i), 4)}, v2, {sr(24 + 4 * m, 4)}, {"s9" if i < 4 else "s10"} offen offset:{(i % 4) * 1024}')
    k('s_endpgm')


def make_prep():
    k = Kernel('prep_kernel', vgpr=0)
    srd_load(k, 4, 'ws')
    srd_load(k, 16, 'Wv')
    srd_load(k, 32, 'Wo')
    srd_load(k, 36, 'x')
    srd_load(k, 40, 'mem0')
    wave_lane(k, 3, 1)
    k('s_waitcnt lgkmcnt(0)')
    k('s_cmp_ge_u32 s2, 8')
    k('s_cbranch_scc1 prep_noprobe')
    k('s_cmp_ge_u32 s3, 2')
    k('s_cbranch_scc1 prep_end')
    hb_base(k, 20)
    k('s_lshl_b32 s21, s3, 21')
    k('s_add_u32 s20, s20, s21')
    k('s_cmp_eq_u32 s3, 0')
    k('s_cbranch_scc1 prep_pgo')
    k('s_sleep 100')
    k.label('prep_pgo')
    k('s_lshl_b32 s21, s2, 7')
    k('s_add_u32 s20, s20, s21')
    k(f's_add_u32 s20, s20, {121 * 16384}')
    k('v_mov_b32 v2, 0')
    k('s_mov_b64 exec, 1')
    k('s_mov_b32 s24, -1')
    k('s_mov_b32 s25, -1')
    k('s_mov_b32 s26, 0')
    k.label('prep_ploop')
    for h in range(2):
        k('s_memtime s[28:29]')
        k('s_waitcnt lgkmcnt(0)')
        k('buffer_store_dword v2, v2, s[4:7], s20 offen sc1')
        k('s_waitcnt vmcnt(0)')
        k('s_memtime s[30:31]')
        k('s_waitcnt lgkmcnt(0)')
        k('s_sub_u32 s30, s30, s28')
        k(f's_min_u32 s{24 + h}, s{24 + h}, s30')
        k(f's_{"add" if h == 0 else "sub"}_u32 s20, s20, 8192')
    k('s_add_u32 s26, s26, 1')
    k('s_cmp_lt_u32 s26, 4')
    k('s_cbranch_scc1 prep_ploop')
    k('s_getreg_b32 s26, hwreg(HW_REG_XCC_ID)')
    k('s_bfe_u32 s26, s26, 0x10002')
    k('s_cmp_lt_u32 s24, s25')
    k('s_cselect_b32 s27, 1, 0')
    k('s_xor_b32 s27, s27, s26')
    k('v_mov_b32 v3, s27')
    k('s_lshl_b32 s21, s3, 3')
    k('s_add_u32 s21, s21, s2')
    k('s_lshl_b32 s21, s21, 2')
    k(f's_add_u32 s21, s21, {NEARW}')
    k('buffer_store_dword v3, v2, s[4:7], s21 offen')
    k('s_endpgm')
    k.label('prep_noprobe')
    k('s_cmp_ge_u32 s2, 264')
    k('s_cbranch_scc1 prep_nobmat')
    emit_bmat(k)
    k.label('prep_nobmat')
    k('s_sub_u32 s2, s2, 264')
    k('s_lshl_b32 s2, s2, 2')
    k('s_add_u32 s2, s2, s3')
    k(f's_cmp_ge_u32 s2, {J_INIT}')
    k('s_cbranch_scc1 prep_noto2')
    emit_ln4(k)
    k('s_endpgm')
    k.label('prep_noto2')
    k('v_lshlrev_b32 v3, 4, v1')
    for i in range(4):
        k(f'v_mov_b32 v{4 + i}, -1')
    k(f's_cmp_ge_u32 s2, {J_HB}')
    k('s_cbranch_scc1 prep_notinit')
    k(f's_sub_u32 s2, s2, {J_INIT}')
    k('v_bfe_u32 v2, v1, 2, 2')
    k('v_and_b32 v48, 1, v1')
    k('v_lshl_add_u32 v2, v2, 1, v48')
    k('v_mul_u32_u24 v2, 1280, v2')
    k('v_bfe_u32 v48, v1, 1, 1')
    k('v_lshrrev_b32 v49, 4, v1')
    k('v_lshl_add_u32 v50, v49, 1, v48')
    k('v_mul_u32_u24 v50, 80, v50')
    k('v_add_u32 v50, v50, v2')
    k('v_lshl_add_u32 v2, v48, 4, v2')
    k('v_and_b32 v48, 1, v49')
    k('v_lshl_add_u32 v2, v48, 5, v2')
    k('v_lshrrev_b32 v48, 1, v49')
    k('v_mul_u32_u24 v48, 80, v48')
    k('v_add_u32 v2, v2, v48')
    for i in range(10):
        if i < 8:
            k(f'buffer_load_dwordx4 {vr(8 + 4 * i, 4)}, v2, s[40:43], 0 offen offset:{i * 160}')
        else:
            k(f'buffer_load_dwordx4 {vr(8 + 4 * i, 4)}, v50, s[40:43], 0 offen offset:{(i - 8) * 640 + 64}')
    assert HC[1] - HC[0] == 8 * 20480
    k('s_mul_i32 s20, s2, 20480')
    k(f's_add_u32 s20, s20, {HC[0]}')
    k('s_add_u32 s21, s20, 10240')
    k('s_waitcnt vmcnt(0)')
    for i in range(40):
        k(f'v_min_u32 v{8 + i}, -2, v{8 + i}')
    for i in range(10):
        if i and i % 4 == 0:
            k('s_add_u32 s20, s20, 4096')
            k('s_add_u32 s21, s21, 4096')
        k(f'buffer_store_dwordx4 {vr(8 + 4 * i, 4)}, v3, s[4:7], s20 offen offset:{(i % 4) * 1024}')
        k(f'buffer_store_dwordx4 v[4:7], v3, s[4:7], s21 offen offset:{(i % 4) * 1024}')
    k('s_endpgm')
    k.label('prep_notinit')
    k(f's_cmp_ge_u32 s2, {J_FILL}')
    k('s_cbranch_scc1 prep_nothb')
    k(f's_sub_u32 s2, s2, {J_HB}')
    hb_base(k, 20)
    k('s_cmp_ge_u32 s2, 120')
    k('s_cselect_b32 s21, 8, 0')
    k('s_add_u32 s21, s21, s2')
    k('s_lshl_b32 s21, s21, 14')
    k('s_add_u32 s20, s20, s21')
    for i in range(16):
        if i and i % 4 == 0:
            k('s_add_u32 s20, s20, 4096')
        k(f'buffer_store_dwordx4 v[4:7], v3, s[4:7], s20 offen offset:{(i % 4) * 1024}')
    k('s_endpgm')
    k.label('prep_nothb')
    k(f's_cmp_ge_u32 s2, {J_END}')
    k('s_cbranch_scc1 prep_end')
    k(f's_sub_u32 s2, s2, {J_FILL}')
    k('s_lshl_b32 s20, s2, 14')
    k(f's_add_u32 s21, s20, {HA[0]}')
    k(f's_add_u32 s22, s20, {STB - 20 * 16384}')
    k(f's_add_u32 s23, s20, {FL - 40 * 16384}')
    k('s_cmp_lt_u32 s2, 20')
    k('s_cselect_b32 s20, s21, s22')
    k('s_cmp_lt_u32 s2, 40')
    k('s_cselect_b32 s20, s20, s23')
    k('s_cselect_b32 s21, -1, 0')
    for i in range(4):
        k(f'v_mov_b32 v{4 + i}, s21')
    for i in range(16):
        if i and i % 4 == 0:
            k('s_add_u32 s20, s20, 4096')
        k(f'buffer_store_dwordx4 v[4:7], v3, s[4:7], s20 offen offset:{(i % 4) * 1024}')
    k.label('prep_end')
    k('s_endpgm')
    assert HA[1] - HA[0] == 163840
    grid = (J_END + 3) // 4 + 264
    return k, grid, 61440 + 12288
```

```python
from gen_common import *
import math

SCALE_L2E = (192 ** -0.5) * math.log2(math.e)
SPIN_MAX = 1 << 18
STAMP_OFF = DIAG
OOB = 0x40000000
OPT = dict(cdelay=1, a1=6, a13=30, a2=0, a23=0, bd=28, bx4=1)

L_MEM, L_QKP, L_POP, L_YOP, L_U, L_K, L_SEL, L_STG = 0, 10240, 16384, 21504, 24576, 34816, 37888, 40960

V_LANE, V_L16, V_QW, V_AL, V_AM, V_PW, V_PMW, V_YW, V_IDX = 1, 2, 3, 4, 5, 6, 7, 8, 9
V_YW2, V_UD, V_FA, V_FD = 10, 11, 12, 13
V_AST, V_KR, V_PR, V_YR = 10, 11, 12, 13
V_T0, V_T1 = 14, 15
MF, QK, YA, T4 = 16, 28, 52, 68
V_UR, V_BST, V_BLD, V_CST, V_KMA, V_KMB, V_YST, V_FLO = 60, 61, 62, 63, 64, 65, 66, 67
MR, PF, YF, D2, XA, XB, KA, KB, SD, POI = 72, 72, 92, 100, 112, 116, 120, 124, 128, 132
BREG = 96
DT, DM, SX = QK + 12, QK + 16, QK + 20
A_SEL, A_SELX, A_UF = 160, 172, 176
WQK = 136

S_W, S_CU, S_HQ, S_GS, S_SEG, S_SPIN = 3, 9, 10, 11, 12, 15
S_CRD, S_CWR, S_AST, S_APO, S_ALD, S_ALO = 16, 17, 18, 19, 20, 21
S_KX, S_KM, S_UL, S_YG, S_SC = 22, 23, 24, 25, 26
S_T0, S_T1, S_T2 = 27, 28, 29
S_B0F, S_B0N, S_B0L = 30, 31, 32
S_BS, S_BL, S_BP, S_BO = 33, 37, 38, 39
M_L8 = 42
S_DBG = 44
S_STA = 48
S_PX, S_SLOW, S_LAYER, S_FL = 68, 69, 70, 71
S_RDY, S_FKM, S_NC, S_NA = 76, 77, 78, 75
S_NB, S_RC, S_RI = 80, 72, 73
S_CR2, S_CR3 = 13, 14

FR = ((0, 1, 2), (3, 4, 2), (5, 6, 7), (8, 9, 7))


def qk_units(role):
    shared = (0, 1, 2) if role % 2 == 0 else (3, 4, 5)
    order = (0, 1, 2) if role % 2 == 0 else (2, 1, 0)
    out = []
    for p in order:
        for a in range(3):
            for m in range(2):
                if a < 2 or 2 * p + m in shared:
                    out.append((a, 2 * p + m))
    assert len(out) == 15
    return out, order


def wb(role, i, t):
    n = i * 10 + t
    return ar(8 * n, 8) if n < 32 else vr(72 + 8 * (n - 32), 8)


def wb_half(role, i, t, hi):
    n = i * 10 + t
    return ar(8 * n + 4 * hi, 4) if n < 32 else vr(72 + 8 * (n - 32) + 4 * hi, 4)


def census_post(k, name):
    k(f's_getreg_b32 s{S_T0}, hwreg(HW_REG_XCC_ID)')
    k(f's_and_b32 s{S_T0}, s{S_T0}, 7')
    k(f's_mul_i32 s{S_T1}, s{S_T0}, s{S_T0}')
    k(f's_lshl_b32 s{S_T1}, s{S_T1}, 14')
    k(f's_lshl_b32 s{S_T0}, s{S_T0}, 6')
    k(f's_add_u32 s{S_T0}, s{S_T0}, s{S_T1}')
    k(f's_add_u32 s{S_T0}, s{S_T0}, 1')
    k(f's_lshl_b32 s{S_SLOW}, s{S_T0}, 5')
    k(f's_lshl_b32 s{S_T2}, s{S_PX}, 2')
    k(f's_cmp_lg_u32 s{S_W}, 0')
    k(f's_cbranch_scc1 {name}_noatom')
    k(f'v_mov_b32 v{V_T1}, 0')
    k(f'v_mov_b32 v{V_T0}, s{S_T0}')
    k('s_mov_b64 exec, 1')
    k(f'buffer_atomic_add v{V_T0}, v{V_T1}, s[{S_DBG}:{S_DBG + 3}], s{S_T2} offen sc1')
    k('s_mov_b64 exec, -1')
    k.label(f'{name}_noatom')


def census_wait(k, name, vt, st0=S_T0, st1=S_T1, st2=S_T2):
    lab = k.newlabel('cen')
    k(f's_lshl_b32 s{st2}, s{S_PX}, 2')
    k(f'v_mov_b32 v{vt + 1}, s{st2}')
    k(f's_mov_b32 s{st2}, 0')
    k.label(lab)
    k(f'buffer_load_dword v{vt}, v{vt + 1}, s[{S_DBG}:{S_DBG + 3}], 0 offen sc1')
    k('s_waitcnt vmcnt(0)')
    k(f'v_readfirstlane_b32 s{st0}, v{vt}')
    k(f's_and_b32 s{st1}, s{st0}, 63')
    k(f's_cmp_eq_u32 s{st1}, 32')
    k(f's_cbranch_scc1 {lab}_done')
    k('s_sleep 4')
    k(f's_add_u32 s{st2}, s{st2}, 1')
    k(f's_cmp_lt_u32 s{st2}, {SPIN_MAX}')
    k(f's_cbranch_scc1 {lab}')
    k(f's_branch {name}_fail')
    k.label(lab + '_done')
    k(f's_cmp_eq_u32 s{st0}, s{S_SLOW}')
    k(f's_cselect_b32 s{S_SLOW}, {1 if OPT.get("forceslow") else 0}, 1')


def emit_rec(k, name, stamps=False, nsteps=64):
    k(f's_lshr_b32 s{S_CU}, s2, 3')
    k(f's_lshr_b32 s{S_HQ}, s{S_CU}, 2')
    k(f's_lshl_b32 s{S_T0}, s{S_PX}, 2')
    k(f's_add_u32 s{S_HQ}, s{S_HQ}, s{S_T0}')
    k(f's_and_b32 s{S_GS}, s{S_CU}, 3')
    sa = S_STA
    k(f's_mul_i32 s{sa}, s{S_HQ}, 384')
    k(f's_mul_i32 s{S_T1}, s{S_GS}, 96')
    k(f's_add_u32 s{sa}, s{sa}, s{S_T1}')
    k(f's_mul_i32 s{S_T1}, s{S_W}, {160 * 12288}')
    k(f's_add_u32 s{sa}, s{sa}, s{S_T1}')
    k(f's_mov_b32 s{sa + 1}, s{sa}')
    k(f's_mul_i32 s{sa + 2}, s{S_W}, 15360')
    k(f's_add_u32 s{sa + 2}, s{sa + 2}, {L_STG}')
    k(f's_add_u32 s{sa + 3}, s{sa + 2}, 61440')
    stage_setup(k, 20, 21, V_LANE, 12288, 96, 22, 8)
    for m in range(2):
        st = Stager(k, 92 + 4 * m, 20, 21, sa + m, sa + 2 + m, 0, 82, 12288, 96, 160, 160)
        st.issue_upto(0)
    c, g, c7, chi, tmp, tmp2 = 16, 17, 18, 19, 20, 21
    k(f'v_and_b32 v{c}, 15, v{V_LANE}')
    k(f'v_lshrrev_b32 v{g}, 4, v{V_LANE}')
    k(f'v_and_b32 v{c7}, 7, v{V_LANE}')
    k(f'v_lshrrev_b32 v{chi}, 3, v{c}')
    k(f'v_lshlrev_b32 v{V_L16}, 4, v{V_LANE}')
    k(f's_mul_i32 s{S_T0}, s{S_CU}, 40')
    k(f'v_add_u32 v{tmp}, s{S_T0}, v{c}')
    k(f'v_lshrrev_b32 v22, 4, v{tmp}')
    k(f'v_mul_u32_u24 v22, 20480, v22')
    k(f'v_and_b32 v{tmp}, 15, v{tmp}')
    k(f'v_lshl_add_u32 v22, v{tmp}, 4, v22')
    k(f'v_lshl_add_u32 v22, v{g}, 8, v22')
    k(f's_lshl_b32 s{S_T1}, s{S_PX}, 2')
    k(f's_mul_i32 s{sa + 5}, s{S_T1}, {40 * 20480}')
    k(f's_add_u32 s{sa + 5}, s{sa + 5}, {BP}')
    k(f's_mul_i32 s{S_T1}, s{S_W}, {40 * 20480}')
    k(f's_add_u32 s{sa + 4}, s{sa + 5}, s{S_T1}')

    def wb_tile(i, va, sb):
        for b in range(20):
            k(f'buffer_load_dwordx4 {wb_half(3, i, b // 2, b % 2)}, v{va}, s[4:7], s{sb} offen offset:{(b % 4) * 1024}')
            if b % 4 == 3:
                k(f's_add_u32 s{sb}, s{sb}, 4096')
    wb_tile(0, 22, sa + 4)
    k(f's_add_u32 s{S_T0}, s{S_T0}, 32')
    k(f'v_add_u32 v{tmp}, s{S_T0}, v{c7}')
    k(f'v_lshrrev_b32 v23, 4, v{tmp}')
    k(f'v_mul_u32_u24 v23, 20480, v23')
    k(f'v_and_b32 v{tmp}, 15, v{tmp}')
    k(f'v_lshl_add_u32 v23, v{tmp}, 4, v23')
    k(f'v_lshl_add_u32 v23, v{g}, 8, v23')
    k(f'v_mul_u32_u24 v{tmp}, {40 * 20480}, v{chi}')
    k(f'v_add_u32 v23, v23, v{tmp}')
    k(f's_mov_b32 s{S_SC}, {f32(SCALE_L2E)}')
    k(f's_mov_b32 s{M_L8}, 0xff00ff00')
    k(f's_mov_b32 s{M_L8 + 1}, 0xff00ff00')
    k(f'v_bfe_u32 v{tmp}, v{V_LANE}, 1, 1')
    k(f'v_mul_u32_u24 v{tmp}, 0xaaaa, v{tmp}')
    k(f'v_add_u32 v{V_IDX}, 0x4444, v{tmp}')
    k(f's_lshr_b32 s{S_T0}, s{S_W}, 1')
    k(f's_lshl_b32 s{S_T0}, s{S_T0}, 10')
    k(f's_and_b32 s{S_T1}, s{S_W}, 1')
    k(f's_lshl_b32 s{S_T1}, s{S_T1}, 3')
    k(f's_add_u32 s{S_T0}, s{S_T0}, s{S_T1}')
    k(f'v_add_u32 v{V_QW}, s{S_T0}, v{V_L16}')
    k(f'v_mul_u32_u24 v{tmp}, 640, v{g}')
    k(f'v_lshl_add_u32 v{V_AL}, v{c}, 4, v{tmp}')
    k(f'v_lshrrev_b32 v{tmp2}, 2, v{c}')
    k(f'v_lshl_add_u32 v{V_AM}, v{tmp2}, 5, v{tmp}')
    k(f'v_and_b32 v{tmp2}, 1, v{c}')
    k(f'v_lshl_add_u32 v{V_AM}, v{tmp2}, 4, v{V_AM}')
    k(f'v_lshl_add_u32 v{tmp}, v{chi}, 2, v{g}')
    k(f'v_and_b32 v{V_PW}, 3, v{V_LANE}')
    k(f'v_lshlrev_b32 v{V_PW}, 8, v{V_PW}')
    k(f'v_lshl_add_u32 v{V_PW}, v{tmp}, 4, v{V_PW}')
    k(f'v_and_b32 v{tmp2}, 4, v{V_LANE}')
    k(f'v_lshl_add_u32 v{V_PW}, v{tmp2}, 1, v{V_PW}')
    k(f's_lshl_b32 s{S_T0}, s{S_W}, 10')
    k(f'v_add_u32 v{V_PW}, s{S_T0}, v{V_PW}')
    k(f'v_lshlrev_b32 v{V_PMW}, 1, v{c7}')
    k(f'v_lshl_add_u32 v{V_PMW}, v{tmp}, 4, v{V_PMW}')
    k(f's_lshl_b32 s{S_T1}, s{S_W}, 8')
    k(f'v_add_u32 v{V_PMW}, s{S_T1}, v{V_PMW}')
    k(f'v_lshlrev_b32 v{V_YW}, 2, v{g}')
    k(f'v_lshl_add_u32 v{V_YW}, v{c}, 4, v{V_YW}')
    k(f'v_add_u32 v{V_YW}, s{S_T1}, v{V_YW}')
    TA_, TB_ = 24, 26
    k(f'v_bfe_u32 v{tmp}, v{V_LANE}, 2, 1')
    k(f'v_and_b32 v{tmp2}, 1, v{g}')
    k(f'v_lshl_add_u32 v{tmp}, v{tmp2}, 2, v{tmp}')
    k(f'v_lshrrev_b32 v{tmp2}, 1, v{g}')
    k(f'v_lshl_add_u32 v{tmp2}, v{tmp2}, 1, v{chi}')
    k(f'v_lshl_add_u32 v{TA_}, v{tmp2}, 3, v{tmp}')
    k(f'v_mul_u32_u24 v{tmp2}, 40, v{tmp2}')
    k(f'v_add_u32 v{TB_}, v{tmp2}, v{tmp}')
    k(f'v_and_b32 v{tmp}, 3, v{V_LANE}')
    k(f'v_lshlrev_b32 v{tmp}, 3, v{tmp}')
    for t_ in (TA_, TB_):
        k(f'v_mul_u32_u24 v{t_}, 96, v{t_}')
        k(f'v_add_u32 v{t_}, v{t_}, v{tmp}')
        k(f'v_add_u32 v{t_}, {L_STG}, v{t_}')
        k(f'v_add_u32 v{t_ + 1}, 61440, v{t_}')
    k(f'v_and_b32 v{tmp}, 1, v{V_LANE}')
    k(f'v_lshlrev_b32 v{tmp}, 4, v{tmp}')
    k(f'v_mov_b32 v{tmp2}, 0x3f80')
    k(f'v_lshlrev_b32 v{tmp}, v{tmp}, v{tmp2}')
    k(f'v_lshrrev_b32 v{tmp2}, 1, v{c}')
    for d in range(4):
        k(f'v_cmp_eq_u32 vcc, {d}, v{tmp2}')
        k(f'v_cndmask_b32 v{28 + d}, 0, v{tmp}, vcc')
        k(f'v_cmp_eq_u32 vcc, {4 + d}, v{tmp2}')
        k(f'v_cndmask_b32 v{32 + d}, 0, v{tmp}, vcc')
        k(f'v_or_b32 v{36 + d}, v{28 + d}, v{32 + d}')
    k(f'v_cmp_eq_u32 vcc, v{g}, v{tmp2}')
    k(f'v_cndmask_b32 v40, 0, v{tmp}, vcc')
    k(f'v_add_u32 v41, 4, v{g}')
    k(f'v_cmp_eq_u32 vcc, v41, v{tmp2}')
    k(f'v_cndmask_b32 v41, 0, v{tmp}, vcc')
    k('v_mov_b32 v42, v40')
    k('v_mov_b32 v43, v41')
    k(f's_mul_i32 s{S_T0}, s{S_PX}, 20480')
    k(f's_mul_i32 s{S_T1}, s{S_LAYER}, {HC[1] - HC[0]}')
    k(f's_add_u32 s{S_T0}, s{S_T0}, s{S_T1}')
    assert HC[1] - HC[0] == HA[1] - HA[0]
    k(f's_add_u32 s{S_CRD}, s{S_T0}, {HC[0]}')
    k(f's_add_u32 s{S_CWR}, s{S_CRD}, 10240')
    k(f's_add_u32 s{S_T0}, s{S_T0}, {HA[0]}')
    k(f's_mul_i32 s{S_T1}, s{S_CU}, 640')
    k(f's_add_u32 s{S_AST}, s{S_T0}, s{S_T1}')
    k(f's_add_u32 s{S_APO}, s{S_AST}, 10240')
    k(f's_mul_i32 s{S_T1}, s{S_W}, 2560')
    k(f's_add_u32 s{S_ALD}, s{S_T0}, s{S_T1}')
    k(f's_add_u32 s{S_ALO}, s{S_ALD}, 10240')
    k(f's_mul_i32 s{S_T2}, s{S_PX}, {RD * RS}')
    k(f's_add_u32 s{S_T2}, s{S_T2}, {RING}')
    k(f's_lshr_b32 s{S_T1}, s{S_CU}, 2')
    k(f's_mul_i32 s{S_KX}, s{S_T1}, 12288')
    k(f's_lshl_b32 s{S_T0}, s{S_GS}, 10')
    k(f's_add_u32 s{S_KX}, s{S_KX}, s{S_T0}')
    k(f's_add_u32 s{S_KX}, s{S_KX}, s{S_T2}')
    k(f's_add_u32 s{S_KX}, s{S_KX}, {R_K}')
    k(f's_mul_i32 s{S_KM}, s{S_T1}, 3072')
    k(f's_add_u32 s{S_KM}, s{S_KM}, s{S_T2}')
    k(f's_add_u32 s{S_KM}, s{S_KM}, {R_KM}')
    k(f's_mul_i32 s{S_T0}, s{S_CU}, 2560')
    k(f's_add_u32 s{S_UL}, s{S_T0}, s{S_T2}')
    k(f's_add_u32 s{S_YG}, s{S_UL}, {R_Y}')
    k(f's_mov_b32 s{S_RC}, 0')
    k(f's_mov_b32 s{S_SEG}, 0')
    k(f's_mov_b32 s{S_RDY}, 0')
    k(f's_lshl_b32 s{S_T0}, s{S_HQ}, 7')
    k(f's_lshl_b32 s{S_T1}, s{S_GS}, 2')
    k(f's_add_u32 s{sa + 6}, s{S_T0}, s{S_T1}')
    k(f's_add_u32 s{S_FKM}, s{sa + 6}, s{S_FL}')
    k(f's_add_u32 s{S_FKM}, s{S_FKM}, {FL_KM}')
    k(f's_lshl_b32 s{S_T0}, s{S_LAYER}, 5')
    k(f's_add_u32 s{S_T0}, s{S_T0}, {NEARW}')
    k(f's_add_u32 s{sa + 8}, s4, s{S_T0}')
    k(f's_addc_u32 s{sa + 9}, s5, 0')
    k(f's_load_dwordx8 s[{sa + 12}:{sa + 19}], s[{sa + 8}:{sa + 9}], 0')
    hb_base(k, S_B0N)
    k(f's_lshl_b32 s{S_T0}, s{S_LAYER}, 21')
    k(f's_add_u32 s{S_B0N}, s{S_B0N}, s{S_T0}')
    k(f's_lshl_b32 s{S_T0}, s{S_CU}, 1')
    k(f's_add_u32 s{S_T0}, s{S_T0}, s{S_W}')
    k(f's_lshr_b32 s{S_T1}, s{S_T0}, 2')
    k(f's_lshl_b32 s{S_T1}, s{S_T1}, 14')
    k(f's_and_b32 s{S_T0}, s{S_T0}, 3')
    k(f's_lshl_b32 s{S_T0}, s{S_T0}, 11')
    k(f's_add_u32 s{S_T0}, s{S_T0}, s{S_T1}')
    k(f's_lshr_b32 s{S_T1}, s{S_CU}, 3')
    k(f's_add_u32 s{S_T1}, s{S_T1}, 8')
    k(f's_lshl_b32 s{S_T1}, s{S_T1}, 14')
    k(f's_and_b32 s{S_T2}, s{S_CU}, 7')
    k(f's_lshl_b32 s{S_T2}, s{S_T2}, 10')
    k(f's_add_u32 s{S_T1}, s{S_T1}, s{S_T2}')
    k(f's_cmp_lt_u32 s{S_W}, 2')
    k(f's_cselect_b32 s{S_T0}, s{S_T0}, s{S_T1}')
    k(f's_cselect_b32 s{S_T1}, 8, 7')
    k(f's_lshl_b32 s{S_T2}, s{S_PX}, s{S_T1}')
    k(f's_add_u32 s{S_B0N}, s{S_B0N}, s{S_T0}')
    k('s_waitcnt lgkmcnt(0)')
    for i in range(1, 8):
        k(f's_add_u32 s{sa + 12}, s{sa + 12}, s{sa + 12 + i}')
    k(f's_cmp_ge_u32 s{sa + 12}, 4')
    k(f's_cselect_b32 s{S_T0}, 0, 1')
    k(f's_lshr_b32 s{S_T1}, s{S_PX}, 2')
    k(f's_xor_b32 s{S_T0}, s{S_T0}, s{S_T1}')
    if OPT.get('flip'):
        k(f's_xor_b32 s{S_T0}, s{S_T0}, 1')
    k(f's_lshl_b32 s{S_T0}, s{S_T0}, 13')
    k(f's_xor_b32 s{S_T1}, s{S_T0}, 8192')
    k(f's_add_u32 s{S_B0F}, s{S_B0N}, s{S_T1}')
    k(f's_add_u32 s{S_B0N}, s{S_B0N}, s{S_T0}')
    k(f's_and_b32 s{S_T0}, s{S_PX}, 3')
    k(f's_mul_i32 s{S_T0}, s{S_T0}, {10 * 16384}')
    k(f's_add_u32 s{S_B0L}, s{S_B0N}, s{S_T0}')
    k(f's_add_u32 s{S_B0F}, s{S_B0F}, s{S_T2}')
    k(f's_add_u32 s{S_B0N}, s{S_B0N}, s{S_T2}')
    k(f's_mov_b32 s{S_BO}, {2 * HB_SLOT}')
    for s_ in (S_SPIN, S_NC, S_NA, S_NB):
        k(f's_mov_b32 s{s_}, 0')
    k('s_waitcnt vmcnt(40)')
    wb_tile(1, 22, sa + 4)
    k('s_waitcnt vmcnt(40)')
    k('s_barrier')
    for r in range(1, 4):
        k(f's_cmp_eq_u32 s{S_W}, {r}')
        k(f's_cbranch_scc1 {name}_pro{r}')

    def bslots():
        return [f's_add_u32 s{S_BP}, s{S_B0L}, s{S_BO}', f's_add_u32 s{S_BO}, s{S_BO}, {HB_SLOT}',
                f's_cmp_eq_u32 s{S_BO}, {3 * HB_SLOT}', f's_cselect_b32 s{S_BO}, 0, s{S_BO}',
                f's_add_u32 s{S_BL}, s{S_B0L}, s{S_BO}',
                f's_add_u32 s{S_BS}, s{S_B0F}, s{S_BO}', f's_add_u32 s{S_BS + 1}, s{S_BS}, {20 * 16384}',
                f's_add_u32 s{S_BS + 2}, s{S_B0N}, s{S_BO}', f's_add_u32 s{S_BS + 3}, s{S_BS + 2}, {20 * 16384}']

    def ring_step():
        return [f's_add_u32 s{S_RC}, s{S_RC}, 1', f's_cmp_eq_u32 s{S_RC}, {RD}',
                f's_cselect_b32 s{S_RC}, 0, s{S_RC}', f's_mov_b32 s{S_RI}, {RS}',
                f's_cselect_b32 s{S_RI}, {hex((-(RD - 1) * RS) & 0xffffffff)}, s{S_RI}']

    def spin(lab):
        k(f's_add_u32 s{S_SPIN}, s{S_SPIN}, 1')
        k(f's_cmp_lt_u32 s{S_SPIN}, {SPIN_MAX}')
        k(f's_cbranch_scc1 {lab}')
        k(f's_branch {name}_fail')

    def flag_min():
        for dp in ('quad_perm:[1,0,3,2]', 'quad_perm:[2,3,0,1]', 'row_half_mirror'):
            k(f'v_min_u32_dpp v{V_FD}, v{V_FD}, v{V_FD} {dp} row_mask:0xf bank_mask:0xf')
        k(f'v_readfirstlane_b32 s{S_RDY}, v{V_FD}')

    def side_dma(add):
        lab = k.newlabel('sd')
        k(f's_add_u32 s{S_T2}, s{S_SEG}, {add}')
        k(f's_cmp_lt_u32 s{S_RDY}, s{S_T2}')
        k(f's_cbranch_scc1 {lab}_wait')
        k.label(lab + '_go')

        def slowpath():
            k.label(lab + '_wait')
            k(f's_mov_b32 s{S_SPIN}, 0')
            k.label(lab + '_w2')
            k(f'buffer_load_dword v{V_FD}, v{V_FA}, s[4:7], s{S_FL} offen sc1')
            k('s_waitcnt vmcnt(0)')
            flag_min()
            k(f's_cmp_ge_u32 s{S_RDY}, s{S_T2}')
            k(f's_cbranch_scc1 {lab}_go')
            k('s_sleep 1')
            spin(lab + '_w2')
        k.defer(slowpath)
        for i in range(0 if OPT.get('nodma') or OPT.get('dmat') == 2 else 3):
            k(f's_mov_b32 m0, {L_K + i * 1024}')
            k(f's_add_u32 s{S_T0}, s{S_KX}, {4096 * i}')
            k(f'buffer_load_dwordx4 v{V_L16}, s[4:7], s{S_T0} offen sc1 lds')
            if OPT.get('dmat') == 1 and i == 0:
                k('s_waitcnt vmcnt(0)')
                k(f's_memtime s[{S_STA + 14}:{S_STA + 15}]')
        for i in range(0 if OPT.get('nodma') else 10):
            head = (i * 1024) // 2560
            k(f's_mov_b32 m0, {L_U + i * 1024}')
            k(f's_add_u32 s{S_T0}, s{S_UL}, {i * 1024 + head * 38400}')
            k(f'buffer_load_dwordx4 v{V_UD if i in (2, 7) else V_L16}, s[4:7], s{S_T0} offen sc1 lds')
            if OPT.get('dmat') == 2 and i == 0:
                k('s_waitcnt vmcnt(0)')
                k(f's_memtime s[{S_STA + 14}:{S_STA + 15}]')
        k(f'buffer_load_dword v{V_FD}, v{V_FA}, s[4:7], s{S_FL} offen sc1')
        for ins in ring_step():
            k(ins)
        k(f's_add_u32 s{S_KX}, s{S_KX}, s{S_RI}')
        k(f's_add_u32 s{S_UL}, s{S_UL}, s{S_RI}')

    def zero_acc(role):
        return [f'v_mov_b32 v{r}, 0' for r in list(range(QK, QK + 24)) + list(range(YA, YA + (16 if role == 3 else 8)))]

    def cbases(role):
        f = FR[role]
        return [f's_add_u32 s{S_CR2}, s{S_CRD}, {f[0] * 1024}', f's_add_u32 s{S_CR3}, s{S_CRD}, {f[2] * 1024}']

    def oob_unless(v, cond):
        cond()
        k(f'v_mov_b32 v0, {hex(OOB)}')
        k(f'v_cndmask_b32 v{v}, v0, v{v}, vcc')

    def prologue(role):
        if role:
            k.label(f'{name}_pro{role}')
        units, _ = qk_units(role)
        for u, (a, tile) in enumerate(units):
            t = FR[role][a]
            for hi in range(2):
                for jq in range(2):
                    row = (80 * t + 40 * hi + 2 * jq) if t < 8 else (320 * (t - 8) + 160 * hi + 32 + 2 * jq)
                    va = (TA_ if t < 8 else TB_) + (tile & 1)
                    k(f'ds_read_b64_tr_b16 {vr(WQK + 8 * u + 4 * hi + 2 * jq, 2)}, v{va} offset:{row * 96 + 32 * (tile >> 1)}')
        if role == 3:
            wb_tile(2, 23, sa + 5)
            k(f's_add_u32 s{sa + 5}, s{sa + 5}, {2 * 40 * 20480 - 20480}')
            for i in range(3):
                k(f'ds_write_b128 v{V_L16}, {vr(28 + 4 * i, 4)} offset:{L_SEL + i * 1024}')
            k(f'v_lshlrev_b32 v{V_YW2}, 2, v{g}')
            k(f'v_lshl_add_u32 v{V_YW2}, v{c7}, 4, v{V_YW2}')
            k(f'v_lshl_add_u32 v{V_YW2}, v{chi}, 8, v{V_YW2}')
            k(f'v_lshrrev_b32 v{tmp}, 5, v{V_LANE}')
            k(f'v_mul_u32_u24 v{tmp}, 38400, v{tmp}')
            k(f'v_add_u32 v{V_UD}, v{tmp}, v{V_L16}')
            k(f'v_and_b32 v{tmp}, 3, v{V_LANE}')
            k(f'v_lshlrev_b32 v{tmp}, 7, v{tmp}')
            k(f's_lshl_b32 s{S_T0}, s{S_PX}, 9')
            k(f's_and_b32 s{S_T1}, s{S_CU}, 12')
            k(f's_add_u32 s{S_T0}, s{S_T0}, s{S_T1}')
            k(f's_add_u32 s{S_T0}, s{S_T0}, {FL_U}')
            k(f'v_add_u32 v{tmp}, s{S_T0}, v{tmp}')
            k(f's_add_u32 s{S_T0}, s{sa + 6}, {FL_K}')
            k(f'v_mov_b32 v{tmp2}, s{S_T0}')
            k(f'v_and_b32 v{V_FA}, 4, v{V_LANE}')
            k(f'v_cmp_eq_u32 vcc, 0, v{V_FA}')
            k(f'v_cndmask_b32 v{V_FA}, v{tmp2}, v{tmp}, vcc')
            k('s_waitcnt vmcnt(40)')
            wb_tile(3, 23, sa + 5)
        else:
            for r in range(16):
                k(f'v_accvgpr_write_b32 a{A_SEL + r}, v{28 + r}')
            rho = 44
            k(f'v_lshrrev_b32 v{tmp}, 1, v{c7}')
            k(f'v_lshlrev_b32 v{rho}, 6, v{tmp}')
            k(f'v_and_b32 v{tmp}, 1, v{c7}')
            k(f'v_lshl_add_u32 v{rho}, v{tmp}, 4, v{rho}')
            k(f'v_lshlrev_b32 v{V_PR}, 8, v{g}')
            k(f'v_lshl_add_u32 v{V_PR}, v{c7}, 4, v{V_PR}')
            k(f'v_add_u32 v{V_YR}, {role * 1024}, v{V_L16}')
            k(f'v_lshlrev_b32 v{V_UR}, 4, v{g}')
            k(f'v_lshl_add_u32 v{V_UR}, v{c}, 6, v{V_UR}')
            k(f'v_add_u32 v{V_UR}, {role * 1024}, v{V_UR}')
            k(f'v_mov_b32 v{V_YST}, v{V_UR}')
            lo8 = lambda: k(f'v_cmp_gt_u32 vcc, 8, v{c}')
            if role < 2:
                k(f'v_lshlrev_b32 v{V_AST}, 6, v{c7}')
                k(f'v_lshl_add_u32 v{V_AST}, v{g}, 4, v{V_AST}')
                k(f'v_add_u32 v{V_AST}, {8 * role}, v{V_AST}')
                oob_unless(V_AST, lo8)
                k(f'v_and_b32 v{tmp}, 3, v{c}')
                k(f'v_lshlrev_b32 v{V_KR}, 6, v{tmp}')
                k(f'v_lshrrev_b32 v{tmp}, 2, v{c}')
                k(f'v_lshl_add_u32 v{V_KR}, v{tmp}, 4, v{V_KR}')
                k(f'v_lshl_add_u32 v{V_KR}, v{g}, 8, v{V_KR}')
                k(f'v_lshrrev_b32 v{tmp}, 1, v{g}')
                k(f'v_lshl_add_u32 v{V_BST}, v{tmp}, 5, v{rho}')
                k(f'v_and_b32 v{tmp}, 1, v{g}')
                if OPT['bx4']:
                    k(f'v_lshl_add_u32 v{tmp}, v{tmp}, 1, v{chi}')
                    k(f'v_mul_u32_u24 v{tmp}, {10 * 16384}, v{tmp}')
                else:
                    k(f'v_lshl_add_u32 v{V_BST}, v{tmp}, 3, v{V_BST}')
                    k(f'v_mul_u32_u24 v{tmp}, {10 * 16384}, v{chi}')
                k(f'v_add_u32 v{V_BST}, v{V_BST}, v{tmp}')
                k(f'v_mov_b32 v{V_BLD}, v{V_L16}')
                k(f'v_lshlrev_b32 v{V_CST}, 4, v{c}')
                k(f'v_lshl_add_u32 v{V_CST}, v{g}, 3, v{V_CST}')
                k(f's_lshl_b32 s{S_T0}, s{S_CU}, 9')
                k(f's_add_u32 s{S_T0}, s{S_T0}, {256 * role}')
                k(f'v_add_u32 v{V_CST}, s{S_T0}, v{V_CST}')
                oob_unless(V_CST, lambda: k(f'v_cmp_gt_u32 vcc, 32, v{V_LANE}'))
            else:
                k(f'v_and_b32 v{tmp}, 3, v{c7}')
                k(f'v_lshlrev_b32 v{V_AST}, 5, v{tmp}')
                k(f'v_lshrrev_b32 v{tmp}, 2, v{c7}')
                k(f'v_lshl_add_u32 v{V_AST}, v{tmp}, 4, v{V_AST}')
                k(f'v_lshl_add_u32 v{V_AST}, v{g}, 3, v{V_AST}')
                k(f'v_add_u32 v{V_AST}, {512 - 16}, v{V_AST}')
                k(f'v_and_b32 v{tmp2}, 40, v{V_LANE}')
                oob_unless(V_AST, lambda: k(f'v_cmp_eq_u32 vcc, 32, v{tmp2}'))
                k(f'v_lshlrev_b32 v{V_BST}, 4, v{c7}')
                k(f'v_lshl_add_u32 v{V_BLD}, v{g}, 7, v{V_BST}')
                k(f'v_and_b32 v{tmp}, 1, v{g}')
                k(f'v_lshl_add_u32 v{V_BST}, v{tmp}, 3, v{V_BST}')
                k(f'v_and_b32 v{tmp}, 2, v{g}')
                k(f'v_add_u32 v{tmp}, v{tmp}, v{chi}')
                k(f'v_mul_u32_u24 v{tmp}, {10 * 16384}, v{tmp}')
                k(f'v_add_u32 v{V_BST}, v{V_BST}, v{tmp}')
                k(f'v_lshlrev_b32 v{tmp}, 9, v{chi}')
                k(f'v_sub_u32 v{V_UR}, v{V_UR}, v{tmp}')
                k(f'v_lshlrev_b32 v{tmp}, 7, v{chi}')
                k(f'v_sub_u32 v{V_YR}, v{V_YR}, v{tmp}')
                k(f'v_lshl_add_u32 v{V_CST}, v{g}, 3, v{rho}')
                k(f's_lshr_b32 s{S_T0}, s{S_CU}, 1')
                k(f's_lshl_b32 s{S_T0}, s{S_T0}, 8')
                k(f's_and_b32 s{S_T1}, s{S_CU}, 1')
                k(f's_lshl_b32 s{S_T1}, s{S_T1}, 5')
                k(f's_add_u32 s{S_T0}, s{S_T0}, s{S_T1}')
                k(f's_add_u32 s{S_T0}, s{S_T0}, 8192')
                k(f'v_add_u32 v{V_CST}, s{S_T0}, v{V_CST}')
                oob_unless(V_CST, lambda: k(f'v_cmp_eq_u32 vcc, 0, v{tmp2}'))
                oob_unless(V_YST, lo8)
                k(f's_lshl_b32 s{S_T0}, s{S_GS}, 9')
                k(f'v_add_u32 v{V_KMA}, s{S_T0}, v{V_BLD}')
                k(f'v_lshrrev_b32 v{V_KMB}, 1, v{V_KMA}')
                k(f'v_add_u32 v{V_KMB}, 2048, v{V_KMB}')
                hi8 = lambda: k(f'v_cmp_le_u32 vcc, 8, v{c}')
                oob_unless(V_KMA, hi8)
                oob_unless(V_KMB, hi8)
                k(f'v_mov_b32 v{V_FLO}, 0')
                oob_unless(V_FLO, lambda: k(f'v_cmp_eq_u32 vcc, 0, v{V_LANE}'))
            for r in (XB + 2, XB + 3, KB + 2, KB + 3):
                k(f'v_mov_b32 v{r}, 0')
            for r in range(4):
                k(f'v_mov_b32 v{POI + r}, -1')
            for ins in bslots():
                k(ins)
        k('s_waitcnt lgkmcnt(0)')
        for ins in zero_acc(role) + cbases(role):
            k(ins)
        census_wait(k, name, V_T0)
        if role == 3:
            side_dma(1)
        k(f's_cmp_eq_u32 s{S_SLOW}, 0')
        k(f's_cbranch_scc1 {name}_loop{role}')
        k(f's_branch {name}_loop{role + 4}')

    for role in range(4):
        prologue(role)

    def stamp(i):
        if stamps:
            k(f's_memtime s[{S_STA + 2 * i}:{S_STA + 2 * i + 1}]')

    def delay(n4):
        while n4 > 0:
            c_ = min(n4, 16)
            k(f's_nop {c_ - 1}')
            n4 -= c_

    def maxcheck(regs, t0, t1):
        out = [f'v_max3_u32 v{t0}, v{regs[0]}, v{regs[1]}, v{regs[2]}']
        rest = regs[3:]
        while len(rest) >= 2:
            out.append(f'v_max3_u32 v{t0}, v{t0}, v{rest[0]}, v{rest[1]}')
            rest = rest[2:]
        if rest:
            out.append(f'v_max_u32 v{t0}, v{t0}, v{rest[0]}')
        out.append(f'v_cmp_eq_u32 vcc, -1, v{t0}')
        return out

    def emit_loop(variant):
        slow = variant >= 4
        role = variant % 4
        sc = ' sc1' if slow else ''
        L = f'{name}_loop{variant}'
        nti = 4 if role == 3 else 2
        units, order = qk_units(role)
        own = FR[role]
        others = [t for t in range(10) if t not in own]
        sel = (lambda i: vr(QK + 4 * i, 4)) if role == 3 else (lambda i: ar(A_SEL + 4 * i, 4))

        def cround():
            k(f'buffer_load_dwordx4 {vr(MF, 4)}, v{V_L16}, s[4:7], s{S_CR2} offen sc1')
            k(f'buffer_load_dwordx4 {vr(MF + 4, 4)}, v{V_L16}, s[4:7], s{S_CR2} offen offset:1024 sc1')
            k(f'buffer_load_dwordx4 {vr(MF + 8, 4)}, v{V_L16}, s[4:7], s{S_CR3} offen sc1')

        def around_l():
            return [f'buffer_load_dwordx4 {vr(MF, 4)}, v{V_AL}, s[4:7], s{S_ALD} offen sc1',
                    f'buffer_load_dwordx4 {vr(MF + 4, 4)}, v{V_AL}, s[4:7], s{S_ALD} offen offset:256 sc1',
                    f'buffer_load_dwordx4 {vr(MF + 8, 4)}, v{V_AM}, s[4:7], s{S_ALD} offen offset:512 sc1']

        def qk(n):
            a, tile = units[n]
            k(f'v_smfmac_f32_16x16x64_bf16 {vr(QK + 4 * tile, 4)}, {vr(MF + 4 * a, 4)}, {vr(WQK + 8 * n, 8)}, v{V_IDX}')

        def post(p):
            b = QK + 8 * p
            return [f'v_pk_add_f32 {vr(b, 2)}, {vr(b, 2)}, {vr(b + 2, 2)}',
                    f'v_pk_add_f32 {vr(b + 4, 2)}, {vr(b + 4, 2)}, {vr(b + 6, 2)}',
                    f'v_cvt_pk_bf16_f32 v{b + 2}, v{b}, v{b + 1}',
                    f'v_cvt_pk_bf16_f32 v{b + 3}, v{b + 4}, v{b + 5}',
                    f'ds_write_b64 v{V_QW}, {vr(b + 2, 2)} offset:{L_QKP + p * 2048}']

        ring = [QK + 4 * s_ for s_ in (3, 0, 1, 2, 4, 5, 3)] if role == 3 else [MR + 4 * n for n in range(7)]

        def ysm(src, i, t):
            k(f'v_smfmac_f32_16x16x64_bf16 {vr(YA + 4 * i, 4)}, {vr(src, 4)}, {wb(role, i, t)}, v{V_IDX}')

        def mread(n):
            return f'ds_read_b128 {vr(ring[n], 4)}, v{V_L16} offset:{L_MEM + others[n] * 1024}'

        yown = [(MF + 4 * a, i, own[a]) for a in range(3) for i in range(nti)]

        def F(n):
            for _ in range(n):
                if yown:
                    ysm(*yown.pop(0))

        k.label(L)
        cround()
        k.label(L + '_pc')
        cround()
        k('s_waitcnt vmcnt(3)')
        stamp(0)
        chk = maxcheck(list(range(MF, MF + 12)), V_T0, V_T1)
        k(chk.pop(0))
        for n in range(6):
            k(chk.pop(0))
            qk(n)
        assert not chk and [u[0] for u in units[:6]] == [0, 0, 1, 1, 2, 2]
        k(f's_cbranch_vccnz {L}_pcf')

        def cfail():
            k.label(L + '_pcf')
            if stamps:
                k(f's_add_u32 s{S_NC}, s{S_NC}, 1')
            for r in range(8):
                k(f'v_mov_b32 v{QK + 8 * order[0] + r}, 0')
            spin(L + '_pc')
        k.defer(cfail)
        q = [f'ds_write_b128 v{V_L16}, {vr(MF + 4 * a, 4)} offset:{L_MEM + own[a] * 1024}' for a in range(3 if role % 2 == 0 else 2)]
        k(q.pop(0))
        for n in range(6, 15):
            qk(n)
            if n == 8:
                q += post(order[0])
            if n == 13:
                q += post(order[1])
            if q:
                k(q.pop(0))
        for ins in q:
            k(ins)
        F(1)
        for ins in post(order[2]):
            k(ins)
        F(3)
        k('s_waitcnt lgkmcnt(0)')
        k('s_barrier')
        stamp(1)
        if role < 3:
            for p in range(3):
                for h in range(2):
                    k(f'ds_read_b128 {vr(QK + 8 * p + 4 * h, 4)}, v{V_L16} offset:{L_QKP + p * 2048 + h * 1024}')
            nk = 0
            if role < 2:
                k(f'ds_read_b128 {vr(KA, 4)}, v{V_KR} offset:{L_K + role * 1024}')
                k(f'ds_read_b64 {vr(KB, 2)}, v{V_KR} offset:{L_K + 2048 + role * 8}')
                nk = 2
            F(2)
            assert not yown
            cv = lambda p: [f'v_cvt_pk_bf16_f32 v{XA + 2 * p + h}, v{D2 + 4 * p + 2 * h}, v{D2 + 4 * p + 2 * h + 1}' for h in range(2)]
            for n in range(6):
                p, h = n // 2, n % 2
                k(f's_waitcnt lgkmcnt({5 + nk})')
                c_ = '0' if h == 0 else vr(D2 + 4 * p, 4)
                k(f'v_mfma_f32_16x16x32_bf16 {vr(D2 + 4 * p, 4)}, {vr(QK + 4 * n, 4)}, {ar(A_SELX, 4)}, {c_}')
                k(mread(n))
                if n == 4:
                    for ins in cv(0):
                        k(ins)
            for ins in cv(1):
                k(ins)
            k(mread(6))
            k('s_waitcnt lgkmcnt(7)')
            k(f'v_mfma_f32_16x16x32_bf16 {vr(SD, 4)}, {vr(KA if role < 2 else XA, 4)}, {vr(XA, 4)}, 0')
            for ins in cv(2):
                k(ins)
            k(f'v_mfma_f32_16x16x32_bf16 {vr(SD, 4)}, {vr(KB if role < 2 else XB, 4)}, {vr(XB, 4)}, {vr(SD, 4)}')
            k('s_waitcnt lgkmcnt(6)')
            ysm(ring[0], 0, others[0])
            for hh in range(4):
                k(f'ds_read_b128 {ar(A_UF + 4 * hh, 4)}, v{V_UR} offset:{L_U + hh * 2560}')
            for h in range(2):
                k(f'v_cvt_pk_bf16_f32 v{T4 + h}, v{SD + 2 * h}, v{SD + 2 * h + 1}')
            for h in range(2):
                k(f'v_min_u32 v{T4 + h}, -2, v{T4 + h}')
            k(f'buffer_store_dwordx2 {vr(T4, 2)}, v{V_AST}, s[4:7], s{S_AST} offen{sc}')
            stamp(2)
            ylist = [(ring[n], i, others[n]) for n in range(7) for i in range(2)][1:]
            side = [f'buffer_store_dwordx2 {vr(POI, 2)}, v{V_AST}, s[4:7], s{S_APO} offen{sc}']
            if role == 2:
                side = [f'buffer_store_dwordx4 {vr(XA, 4)}, v{V_KMA}, s[4:7], s{S_KM} offen{sc}',
                        f'buffer_store_dwordx2 {vr(XB, 2)}, v{V_KMB}, s[4:7], s{S_KM} offen{sc}'] + side
            hooks = {0: ['s_waitcnt lgkmcnt(4)']}
            pre = {}
        else:
            F(2)
            for n in range(6):
                k(mread(n))
                F(1)
            assert not yown
            stamp(2)
            ylist = [(ring[n], i, others[n]) for n in range(7) for i in range(4)]
            side = []
            pre = {0: 's_waitcnt lgkmcnt(0)', 24: 's_waitcnt lgkmcnt(3)'}
            hooks = {3: [mread(6)]}
            for i in range(3):
                hooks[7 + 4 * i] = [f'ds_read_b128 {vr(QK + 4 * i, 4)}, v{V_L16} offset:{L_SEL + i * 1024}']

        def yrest(final):
            sq = list(side)
            a1, a2 = (OPT['a1'], OPT['a2']) if role < 3 else (OPT['a13'] - 12, OPT['a23'] - 12 if OPT['a23'] else 0)
            for n, y in enumerate(ylist):
                if n in pre:
                    k(pre[n])
                ysm(*y)
                for ins in hooks.get(n, []):
                    k(ins)
                if not final and (n == a1 or (a2 and n == a2)):
                    sq += around_l()
                if sq:
                    k(sq.pop(0))
            for ins in sq:
                k(ins)
            for i in range(nti):
                b = YA + 4 * i
                k(f'v_pk_add_f32 {vr(b, 2)}, {vr(b, 2)}, {vr(b + 2, 2)}')
                k(f'v_cvt_pk_bf16_f32 v{b}, v{b}, v{b + 1}')
                if i < 2:
                    k(f'ds_write_b32 v{V_YW}, v{b} offset:{L_YOP + i * 1024}')
                else:
                    k(f'ds_write_b32 v{V_YW2}, v{b} offset:{L_YOP + 2048 + (i - 2) * 512}')

        def put_flag(off):
            k(f's_add_u32 s{S_T0}, s{S_SEG}, 1')
            k(f'v_mov_b32 v{V_T0}, s{S_T0}')
            k(f'buffer_store_dword v{V_T0}, v{V_FLO}, s[4:7], s{S_FKM} offen offset:{off}{sc}')

        k(f's_cmp_eq_u32 s{S_SEG}, {nsteps - 1}')
        k(f's_cbranch_scc1 {L}_last')

        def last():
            k.label(L + '_last')
            yrest(True)
            if role == 2:
                k('s_waitcnt vmcnt(0)')
                put_flag(0)
            k('s_waitcnt lgkmcnt(0)')
            k('s_barrier')
            if role < 3:
                k(f'ds_read_b128 {vr(YF, 4)}, v{V_YR} offset:{L_YOP}')
                k('s_waitcnt lgkmcnt(0)')
                k(f'buffer_store_dwordx4 {vr(YF, 4)}, v{V_YST}, s[4:7], s{S_YG} offen{sc}')
                k('s_waitcnt vmcnt(0)')
            k('s_barrier')
            if role == 2:
                put_flag(16)
            k('s_endpgm')
        k.defer(last)
        yrest(False)
        stamp(3)
        k.label(L + '_pa')
        for ins in around_l():
            k(ins)
        k('s_waitcnt vmcnt(3) lgkmcnt(0)' if role == 3 else 's_waitcnt vmcnt(3)')
        stamp(4)
        chk = maxcheck(list(range(MF, MF + 12)), V_T0, V_T1)
        for n, (d, c_) in enumerate(((DT, '0'), (DT, vr(DT, 4)), (DM, '0'))):
            k(chk.pop(0))
            k(chk.pop(0))
            k(f'v_mfma_f32_16x16x32_bf16 {vr(d, 4)}, {vr(MF + 4 * n, 4)}, {sel(n)}, {c_}')
        k(chk.pop(0))
        assert not chk
        k(f's_cbranch_vccnz {L}_paf')

        def afail():
            k.label(L + '_paf')
            if stamps:
                k(f's_add_u32 s{S_NA}, s{S_NA}, 1')
            spin(L + '_pa')
        k.defer(afail)
        X = [DT, DT + 1, DT + 2, DT + 3, DM]
        mx, t1 = SX, SX + 1
        dpps = ('quad_perm:[1,0,3,2]', 'quad_perm:[2,3,0,1]', 'row_half_mirror')
        k(f'v_max3_f32 v{mx}, v{X[0]}, v{X[1]}, v{X[2]}')
        k(f'v_cndmask_b32 v{DM}, v{DM}, v{DM + 1}, s[{M_L8}:{M_L8 + 1}]')
        k(f'v_max3_f32 v{mx}, v{mx}, v{X[3]}, v{X[4]}')
        for dp in dpps:
            k(f'v_max_f32_dpp v{mx}, v{mx}, v{mx} {dp} row_mask:0xf bank_mask:0xf')
        k(f'v_mul_f32 v{mx}, s{S_SC}, v{mx}')
        for x in X:
            k(f'v_fma_f32 v{x}, v{x}, s{S_SC}, -v{mx}')
        for x in X:
            k(f'v_exp_f32 v{x}, v{x}')
        k(f'v_add_f32 v{mx}, v{X[0]}, v{X[1]}')
        k(f'v_add_f32 v{t1}, v{X[2]}, v{X[3]}')
        k(f'v_add_f32 v{mx}, v{mx}, v{t1}')
        k(f'v_add_f32 v{mx}, v{mx}, v{X[4]}')
        for dp in dpps:
            k(f'v_add_f32_dpp v{mx}, v{mx}, v{mx} {dp} row_mask:0xf bank_mask:0xf')
        k(f'v_rcp_f32 v{mx}, v{mx}')
        k(f'v_pk_mul_f32 {vr(DT, 2)}, {vr(DT, 2)}, {vr(mx, 2)} op_sel_hi:[1,0]')
        k(f'v_pk_mul_f32 {vr(DT + 2, 2)}, {vr(DT + 2, 2)}, {vr(mx, 2)} op_sel_hi:[1,0]')
        k(f'v_mul_f32 v{DM}, v{DM}, v{mx}')
        k(f'v_cvt_pk_bf16_f32 v{DT}, v{DT}, v{DT + 1}')
        k(f'v_cvt_pk_bf16_f32 v{DT + 1}, v{DT + 2}, v{DT + 3}')
        k(f'ds_write_b64 v{V_PW}, {vr(DT, 2)} offset:{L_POP}')
        k(f'v_cvt_pk_bf16_f32 v{DM}, v{DM}, v{DM}')
        k(f'ds_write_b16 v{V_PMW}, v{DM} offset:{L_POP + 4096}')
        if role == 2:
            put_flag(0)
        if role == 3:
            flag_min()
        k('s_waitcnt lgkmcnt(0)')
        k('s_barrier')
        stamp(5)
        idle = zero_acc(role)
        idle += [f's_xor_b32 s{a}, s{a}, s{b}' for (a, b) in ((S_AST, S_APO), (S_APO, S_AST), (S_AST, S_APO),
                                                               (S_ALD, S_ALO), (S_ALO, S_ALD), (S_ALD, S_ALO))]
        if role < 3:
            idle += ring_step() + [f's_add_u32 s{S_KM}, s{S_KM}, s{S_RI}']
        idle += [f's_mov_b32 s{S_SPIN}, 0']
        if role == 3:
            if OPT.get('dmaearly'):
                side_dma(2)
                if not OPT.get('dmat'):
                    stamp(7)
            for ins in idle:
                k(ins)
            k('s_barrier')
            stamp(6)
            if not OPT.get('dmaearly'):
                side_dma(2)
                stamp(7)
        else:
            for ks in range(5):
                k(f'ds_read_b128 {vr(PF + 4 * ks, 4)}, v{V_PR} offset:{L_POP + ks * 1024}')
            k(f'ds_read_b128 {vr(YF, 4)}, v{V_YR} offset:{L_YOP}')
            for ks in range(5):
                k(f's_waitcnt lgkmcnt({5 - ks if ks < 4 else 0})')
                a = ar(A_UF + 4 * ks, 4) if ks < 4 else vr(YF, 4)
                c_ = '0' if ks == 0 else vr(SD, 4)
                k(f'v_mfma_f32_16x16x32_bf16 {vr(SD, 4)}, {a}, {vr(PF + 4 * ks, 4)}, {c_}')
            for _ in range(7):
                k(idle.pop(0))
            for h in range(2):
                k(f'v_cvt_pk_bf16_f32 v{T4 + h}, v{SD + 2 * h}, v{SD + 2 * h + 1}')
            if role < 2 and OPT['bx4']:
                for h in range(4):
                    k(f'v_min_u32 v{T4 + 3 - h}, -2, v{T4 + (3 - h) % 2}')
                k(f'v_permlane16_swap_b32 v{T4}, v{T4 + 2}')
                k(f'v_permlane16_swap_b32 v{T4 + 1}, v{T4 + 3}')
                for q_ in (0, 2):
                    k(f'buffer_store_dwordx4 {vr(T4, 4)}, v{V_BST}, s[4:7], s{S_BS + q_} offen sc1')
            else:
                for h in range(2):
                    k(f'v_min_u32 v{T4 + h}, -2, v{T4 + h}')
                for q_ in ((0, 1, 2, 3) if role < 2 else (0, 2)):
                    k(f'buffer_store_dwordx2 {vr(T4, 2)}, v{V_BST}, s[4:7], s{S_BS + q_} offen sc1')
            stamp(6)
            bo = 1024 if role < 2 else 512
            n4 = 4 * OPT['bd'] - len(idle)
            for ins in idle:
                k(ins)
            delay(n4)

            def bround():
                for n in range(2):
                    k(f'buffer_load_dwordx4 {vr(BREG + 4 * n, 4)}, v{V_BLD}, s[4:7], s{S_BL} offen offset:{n * bo} sc1')

            def bsum():
                chk = maxcheck(list(range(BREG, BREG + 8)), V_T0, V_T1)
                for n in range(2):
                    k(chk.pop(0))
                    k(chk.pop(0))
                    k(f'v_mfma_f32_16x16x32_bf16 {vr(SD, 4)}, {ar(A_SEL, 4)}, {vr(BREG + 4 * n, 4)}, {"0" if n == 0 else vr(SD, 4)}')
                k(chk.pop(0))
                assert not chk
            bround()
            k('s_barrier')
            k(f'buffer_store_dwordx4 {vr(YF, 4)}, v{V_YST}, s[4:7], s{S_YG} offen{sc}')
            for q_ in range(2 if role < 2 else 1):
                k(f'buffer_store_dwordx4 {vr(POI, 4)}, v{V_L16}, s[4:7], s{S_BP} offen offset:{q_ * 1024} sc1')
            k(f's_add_u32 s{S_YG}, s{S_YG}, s{S_RI}')
            k(f's_waitcnt vmcnt({3 if role < 2 else 2})')
            bsum()
            k(f's_cbranch_vccnz {L}_pbf')
            k.label(L + '_pbok')
            stamp(7)

            def bfail():
                k.label(L + '_pbf')
                bround()
                k.label(L + '_pbl')
                if stamps:
                    k(f's_add_u32 s{S_NB}, s{S_NB}, 1')
                bround()
                k('s_waitcnt vmcnt(2)')
                bsum()
                k(f's_cbranch_vccz {L}_pbok')
                spin(L + '_pbl')
            k.defer(bfail)
            for h in range(2):
                k(f'v_cvt_pk_bf16_f32 v{T4 + h}, v{SD + 2 * h}, v{SD + 2 * h + 1}')
            for h in range(2):
                k(f'v_min_u32 v{T4 + h}, -2, v{T4 + h}')
            k(f'buffer_store_dwordx2 {vr(T4, 2)}, v{V_CST}, s[4:7], s{S_CWR} offen{sc}')
            k(f'buffer_store_dwordx2 {vr(POI, 2)}, v{V_CST}, s[4:7], s{S_CRD} offen{sc}')
        k(f's_add_u32 s{S_SEG}, s{S_SEG}, 1')
        for (a, b) in ((S_CRD, S_CWR), (S_CWR, S_CRD), (S_CRD, S_CWR)):
            k(f's_xor_b32 s{a}, s{a}, s{b}')
        for ins in cbases(role):
            k(ins)
        if role < 3:
            for ins in bslots():
                k(ins)
        if stamps:
            k(f's_memrealtime s[{S_STA + 16}:{S_STA + 17}]')
            k('s_waitcnt lgkmcnt(0)')
            for i in range(9):
                k(f'v_writelane_b32 v{V_T0}, s{S_STA + 2 * i}, {i}')
            for i, s_ in enumerate((S_NC, S_NA, S_NB)):
                k(f'v_writelane_b32 v{V_T0}, s{s_}, {9 + i}')
                k(f's_mov_b32 s{s_}, 0')
            k(f's_lshl_b32 s{S_T0}, s2, 2')
            k(f's_add_u32 s{S_T0}, s{S_T0}, s{S_W}')
            k(f's_lshl_b32 s{S_T0}, s{S_T0}, 6')
            k(f's_add_u32 s{S_T0}, s{S_T0}, s{S_SEG}')
            k(f's_lshl_b32 s{S_T0}, s{S_T0}, 6')
            k(f's_add_u32 s{S_T0}, s{S_T0}, {STAMP_OFF - 64}')
            k(f'v_lshlrev_b32 v{V_T1}, 2, v{V_LANE}')
            k('s_mov_b64 exec, 0xffff')
            k(f'buffer_store_dword v{V_T0}, v{V_T1}, s[4:7], s{S_T0} offen')
            k('s_mov_b64 exec, -1')
        k('s_barrier')
        delay(4 * OPT['cdelay'])
        k(f's_branch {L}')
        k.flush_deferred()

    for v in range(8):
        emit_loop(v)
```

```python
S, D, H, E, M, SEG, NS = 2048, 640, 32, 192, 8, 32, 64
KB = 1024
off = 0
def alloc(n, align=4096):
    global off
    off = (off + align - 1) // align * align
    o = off
    off += n
    return o
BP   = alloc(32 * 40 * 20 * KB)
HF   = alloc(128 * 20 * KB)
RD = 6
R_U, R_Y, R_K, R_V, R_KM, R_P, RS = 0, 163840, 204800, 253952, 303104, 315392, 325632
RING = alloc(8 * RD * RS)
PQ   = alloc(128 * 8 * 5 * KB)
KVP  = alloc(32 * 32 * 6 * KB)
X1   = alloc(S * D * 4)
HC_SZ = 8 * 2 * 10240
HA_SZ = 8 * 2 * 10240
HC = [alloc(HC_SZ), alloc(HC_SZ)]
HA = [alloc(HA_SZ), alloc(HA_SZ)]
HB_RES = alloc(6 << 20)
HB_SLOT = 40 * 16384
FL_K, FL_V, FL_Q, FL_U, FL_KM, FL_T, FL_SZ = 0, 4096, 8192, 12288, 16384, 20480, 49152
FL = alloc(2 * FL_SZ)
OP = alloc(64 * 8 * 40 * KB)
DIAG = alloc(5 << 20)
NEARW = alloc(64)
WBP  = alloc(8 * 20 * 15 * KB)
WO2P = alloc(40 * 20 * KB)
KVF  = alloc(8 * 6 * 5 * 256)
STB  = alloc(64 * 2 * 20 * 128)
WS_END = off
WS_BYTES = 268435456
assert WS_END <= WS_BYTES, WS_END

def fmap(f, g, j):
    if f < 4:
        return 48 * f + (0 if j < 4 else 16) + 4 * g + (j & 3)
    base = 32 + 96 * (f - 4) + (0 if j < 4 else 48)
    return base + 4 * g + (j & 3)

def keymap(g, j):
    return (0 if j < 4 else 16) + 4 * g + (j & 3)
def colbase(sig, half):
    if sig < 32:
        return 40 * (sig >> 1) + 16 * (sig & 1) + 8 * half
    return 40 * (2 * (sig - 32) + half) + 32

def kcol(blk, g, j):
    w16 = 8 * (g & 1) + j
    return colbase(2 * blk + (g >> 1), (w16 & 3) >> 1) + 2 * (w16 >> 2) + (w16 & 1)
if __name__ == '__main__':
    print(WS_END, WS_BYTES)
```
